```python
import torch

def _softmax(x, axis=-1):
    return torch.softmax(x, dim=axis)
def _gelu(x):
    return torch.nn.functional.gelu(x, approximate="tanh")
def _silu(x):
    return torch.nn.functional.silu(x)
def _sigmoid(x):
    return torch.sigmoid(x)
def _layernorm(x, axis=-1, eps=1e-5):
    m = x.mean(dim=axis, keepdim=True)
    v = x.var(dim=axis, keepdim=True, unbiased=False)
    return (x - m) / torch.sqrt(v + eps)
def _scatter_add(tgt, idx, src, axis=0):
    return tgt.clone().index_add_(axis, idx, src)
def _segment_sum(src, seg, n):
    out = torch.zeros((n,) + src.shape[1:], dtype=src.dtype)
    return out.index_add_(0, seg, src)
def _pad(x, pw):
    flat = tuple(v for pair in reversed(pw) for v in pair)
    return torch.nn.functional.pad(x, flat)

kernel_name = 'standalone__sliding_local_dilated__prompt'

def setup_inputs():

    _w = (lambda a: (lambda t: t.to(torch.bfloat16) if t.is_floating_point() else t)(torch.as_tensor(a)))
    B, S, D = 1, 2048, 576
    return {
        "x": _w((lambda *s: torch.randn(*s, dtype=torch.bfloat16) * 0.2)(B, S, D)),
        "wqkv": _w((lambda *s: torch.randn(*s, dtype=torch.bfloat16) * 0.2)(D, 3 * D)),
        "wo": _w((lambda *s: torch.randn(*s, dtype=torch.bfloat16) * 0.05)(D, D)),
    }

def reference(x, wqkv, wo):
    B, S, D = x.shape
    H = 32; Dh = D // H
    W, dil = 8, 2
    qkv = (lambda x, *d: x.permute(*d))((x @ wqkv).reshape(B, S, 3, H, Dh), 2, 0, 3, 1, 4)
    q, k, v = qkv[0], qkv[1], qkv[2]
    scale = Dh ** -0.5
    pos = torch.arange(S)
    off = torch.arange(W) * dil
    idx = pos[:, None] - off[None, :]
    mask = idx >= 0
    idx_c = torch.where(mask, idx, 0).reshape(-1)
    kg = k[:, :, idx_c, :].reshape(B, H, S, W, Dh)
    vg = v[:, :, idx_c, :].reshape(B, H, S, W, Dh)
    logits = torch.einsum("bhsd,bhswd->bhsw", q, kg) * scale
    logits = torch.where(mask[None, None, :, :], logits, -1e9)
    attn = _softmax(logits, axis=-1)
    o = torch.einsum("bhsw,bhswd->bhsd", attn, vg)
    return (lambda x, *d: x.permute(*d))(o, 0, 2, 1, 3).reshape(B, S, D) @ wo
```

```python
KN = "standalone__sliding_local_dilated__prompt_kernel"
class A:
    def __init__(self):
        self.l = []
    def __call__(self, s):
        for x in s.split("\n"):
            x = x.strip()
            if x:
                self.l.append(("" if x.endswith(":") else "    ") + x)
    def text(self):
        return "\n".join(self.l) + "\n"

HDR = """; Kernarg layout for this problem (48 bytes, ptrs only, base s[0:1]):
"""
def kernel_file(body, grid, block, lds, vgpr=256, accum=None, sgpr=96, name=KN):
    if accum is None: accum = min(256, (vgpr + 3) // 4 * 4)
    s = HDR + f"; @launch grid=({grid},1,1) block=({block},1,1) lds={lds}\n"
    s += '.amdgcn_target "amdgcn-amd-amdhsa--gfx950"\n.text\n'
    s += f".globl {name}\n.p2align 8\n.type {name},@function\n{name}:\n"
    s += body
    s += '.section .rodata,"a"\n.p2align 6\n'
    s += f""".amdhsa_kernel {name}
  .amdhsa_next_free_vgpr {vgpr}
  .amdhsa_next_free_sgpr {sgpr}
  .amdhsa_accum_offset {accum}
  .amdhsa_group_segment_fixed_size 0
  .amdhsa_kernarg_size 48
  .amdhsa_user_sgpr_count 2
  .amdhsa_user_sgpr_kernarg_segment_ptr 1
  .amdhsa_system_sgpr_workgroup_id_x 1
.end_amdhsa_kernel
"""
    return s
```

```python
import sys
from asmlib import *
QKV_OFF = 0
O_OFF = 8 << 20
def gemm(a, name, a_src, b_src, c_dst, N, ncol, stamp):
    nwg = 16 * ncol
    a(f".globl {name}\n.p2align 8\n.type {name},@function\n{name}:")
    a("s_memrealtime s[40:41]")
    a("s_load_dwordx4 s[4:7], s[0:1], 0\ns_load_dwordx4 s[32:35], s[0:1], 16\ns_load_dwordx4 s[36:39], s[0:1], 32")
    a(f"s_cmp_ge_u32 s2, {nwg}\ns_cbranch_scc1 L_end_{name}")
    a("s_and_b32 s20, s2, 15\ns_lshr_b32 s21, s2, 4")
    a("v_lshrrev_b32 v1, 6, v0\nv_and_b32 v0, 63, v0\ns_nop 0\nv_readfirstlane_b32 s25, v1")
    a("s_waitcnt lgkmcnt(0)")
    def srd(d, src, size):
        kind, off = src
        reg = {"x": 4, "wqkv": 6, "wo": 32, "out": 34, "ws": 38}[kind]
        a(f"s_add_u32 s{d}, s{reg}, {off}\ns_addc_u32 s{d+1}, s{reg+1}, 0\ns_mov_b32 s{d+2}, {size}\ns_mov_b32 s{d+3}, 0x20000")
    srd(8, a_src, 2048 * 1152); srd(12, b_src, 576 * N * 2); srd(16, c_dst, 2048 * N * 2)
    a("s_lshl_b32 s26, s20, 7\ns_lshl_b32 s27, s25, 3\ns_add_u32 s26, s26, s27")
    a("v_lshrrev_b32 v2, 3, v0\nv_add_u32 v2, s26, v2\nv_lshrrev_b32 v3, 1, v2\nv_xor_b32 v3, v3, v0\nv_and_b32 v3, 7, v3\nv_lshlrev_b32 v3, 4, v3")
    a("v_mul_u32_u24 v2, 1152, v2\nv_add_u32 v2, v2, v3")
    a("v_lshrrev_b32 v4, 3, v0\nv_add_u32 v4, s27, v4")
    a("v_and_b32 v5, 2, v4\nv_lshrrev_b32 v6, 1, v4\nv_and_b32 v6, 4, v6\nv_or_b32 v5, v5, v6\nv_xor_b32 v5, v5, v0\nv_and_b32 v5, 7, v5\nv_lshlrev_b32 v5, 4, v5")
    a(f"v_mul_u32_u24 v4, {N*2}, v4\nv_add_u32 v4, v4, v5\ns_lshl_b32 s27, s21, 7\nv_add_u32 v4, s27, v4")
    a("s_lshl_b32 s30, s25, 10")
    a("v_and_b32 v6, 15, v0\nv_lshrrev_b32 v7, 4, v0\nv_lshrrev_b32 v8, 1, v6\nv_xor_b32 v8, v8, v7\nv_lshlrev_b32 v8, 4, v8")
    a("s_lshl_b32 s27, s25, 5\nv_add_u32 v9, s27, v6\nv_lshlrev_b32 v9, 7, v9\nv_add_u32 v10, v9, v8\nv_xor_b32 v11, 64, v10")
    a("v_lshrrev_b32 v12, 2, v0\nv_and_b32 v12, 3, v12\nv_lshlrev_b32 v13, 3, v7\nv_add_u32 v13, v13, v12\nv_lshlrev_b32 v13, 7, v13")
    a("v_lshrrev_b32 v12, 1, v12\nv_and_b32 v14, 1, v7\nv_lshlrev_b32 v14, 1, v14\nv_or_b32 v12, v12, v14\nv_lshlrev_b32 v12, 5, v12")
    a("v_and_b32 v14, 3, v0\nv_lshlrev_b32 v14, 3, v14\nv_add_u32 v13, v13, v14\nv_add_u32 v13, v13, v12\nv_add_u32 v13, 16384, v13")
    for t in range(4):
        a(f"v_xor_b32 v{16+t}, {32*t}, v13")
    for i in range(32):
        a(f"v_mov_b32 v{64+i}, 0")
    for ch in range(9):
        for m in range(4):
            a(f"s_mov_b32 s31, {ch*128 + m*32*1152}\ns_add_u32 m0, s30, {m*4096}\ns_nop 0\nbuffer_load_dwordx4 v2, s[8:11], s31 offen lds")
        for m in range(2):
            a(f"s_mov_b32 s31, {(ch*64 + m*32)*N*2}\ns_add_u32 m0, s30, {16384+m*4096}\ns_nop 0\nbuffer_load_dwordx4 v4, s[12:15], s31 offen lds")
        a("s_waitcnt vmcnt(0)\ns_barrier")
        for s in range(2):
            for t in range(2):
                a(f"ds_read_b128 v[{24+4*t}:{27+4*t}], v{10+s} offset:{t*2048}")
            for t in range(4):
                for h in range(2):
                    a(f"ds_read_b64_tr_b16 v[{32+4*t+2*h}:{33+4*t+2*h}], v{16+t} offset:{(32*s+4*h)*128}")
            a("s_waitcnt lgkmcnt(0)")
            for r in range(2):
                for t in range(4):
                    d = 64 + 4 * (r * 4 + t)
                    a(f"v_mfma_f32_16x16x32_bf16 v[{d}:{d+3}], v[{32+4*t}:{35+4*t}], v[{24+4*r}:{27+4*r}], v[{d}:{d+3}]")
        a("s_barrier")
    a("s_nop 7\ns_nop 7")
    a("s_lshl_b32 s26, s20, 7\ns_lshl_b32 s27, s25, 5\ns_add_u32 s26, s26, s27\nv_add_u32 v2, s26, v6")
    a(f"v_mul_u32_u24 v2, {N*2}, v2\nv_lshlrev_b32 v3, 3, v7\nv_add_u32 v2, v2, v3\ns_lshl_b32 s27, s21, 7\nv_add_u32 v2, s27, v2")
    for r in range(2):
        a(f"s_mov_b32 s31, {r*16*N*2}")
        for t in range(4):
            d = 64 + 4 * (r * 4 + t)
            a(f"v_cvt_pk_bf16_f32 v{d}, v{d}, v{d+1}\nv_cvt_pk_bf16_f32 v{d+1}, v{d+2}, v{d+3}")
            a(f"buffer_store_dwordx2 v[{d}:{d+1}], v2, s[16:19], s31 offen offset:{32*t}")
    if stamp:
        dostamp(a)
    a(f"L_end_{name}:\ns_endpgm")

def dostamp(a):
    a("s_waitcnt vmcnt(0)\ns_memrealtime s[42:43]\ns_waitcnt lgkmcnt(0)")
    a("s_not_b32 s40, s40\nv_mov_b32 v1, 0\nv_mov_b32 v2, s40\nv_mov_b32 v3, s42\ns_mov_b64 exec, 1")
    a("global_atomic_umax v1, v2, s[36:37]\nglobal_atomic_umax v1, v3, s[36:37] offset:4")

def attn(a, name, stamp):
    a(f".globl {name}\n.p2align 8\n.type {name},@function\n{name}:")
    a("s_memrealtime s[40:41]")
    a("s_load_dwordx4 s[36:39], s[0:1], 32")
    a(f"s_cmp_ge_u32 s2, 256\ns_cbranch_scc1 L_end_{name}")
    a("s_waitcnt lgkmcnt(0)")
    a(f"s_add_u32 s8, s38, {QKV_OFF}\ns_addc_u32 s9, s39, 0\ns_mov_b32 s10, {2048*3456}\ns_mov_b32 s11, 0x20000")
    a(f"s_add_u32 s12, s38, {O_OFF}\ns_addc_u32 s13, s39, 0\ns_mov_b32 s14, {2048*1152}\ns_mov_b32 s15, 0x20000")
    a("v_and_b32 v1, 31, v0\nv_lshrrev_b32 v2, 5, v0\ns_lshl_b32 s3, s2, 3\nv_add_u32 v2, s3, v2")
    a("v_mul_u32_u24 v3, 36, v1\nv_mul_u32_u24 v4, 3456, v2\nv_add_u32 v4, v4, v3")
    a("v_mul_u32_u24 v5, 1152, v2\nv_add_u32 v5, v5, v3")
    def ld(base, voff, off):
        a(f"buffer_load_dwordx4 v[{base}:{base+3}], {voff}, s[8:11], 0 offen offset:{off}")
        a(f"buffer_load_dwordx4 v[{base+4}:{base+7}], {voff}, s[8:11], 0 offen offset:{off+16}")
        a(f"buffer_load_dword v{base+8}, {voff}, s[8:11], 0 offen offset:{off+32}")
    ld(10, "v4", 0)
    for w in range(8):
        a(f"v_subrev_u32 v6, {2*w}, v2\nv_max_i32 v6, 0, v6\nv_mul_u32_u24 v6, 3456, v6\nv_add_u32 v6, v6, v3")
        ld(20 + 10 * w, "v6", 1152)
        ld(100 + 10 * w, "v6", 2304)
    a("s_waitcnt vmcnt(0)")
    a("s_mov_b32 s20, 0xffff0000")
    for i in range(9):
        a(f"v_lshlrev_b32 v{180+2*i}, 16, v{10+i}\nv_and_b32 v{181+2*i}, s20, v{10+i}")
    import math, struct
    c = 18 ** -0.5 * math.log2(math.e)
    cb = struct.unpack("<I", struct.pack("<f", c))[0]
    a(f"s_mov_b32 s21, {cb}\nv_mov_b32 v9, 0xf149f2ca")
    for w in range(8):
        a(f"v_mov_b32 v{200+w}, 0")
        for i in range(9):
            k = 20 + 10 * w + i
            a(f"v_lshlrev_b32 v7, 16, v{k}\nv_and_b32 v8, s20, v{k}\nv_fmac_f32 v{200+w}, v7, v{180+2*i}\nv_fmac_f32 v{200+w}, v8, v{181+2*i}")
        a(f"v_mul_f32 v{200+w}, s21, v{200+w}\nv_cmp_le_u32 vcc, {2*w}, v2\ns_nop 1\nv_cndmask_b32 v{200+w}, v9, v{200+w}, vcc")
    a("v_max3_f32 v7, v200, v201, v202\nv_max3_f32 v7, v7, v203, v204\nv_max3_f32 v7, v7, v205, v206\nv_max_f32 v7, v7, v207")
    for w in range(8):
        a(f"v_sub_f32 v{200+w}, v{200+w}, v7\nv_exp_f32 v{200+w}, v{200+w}")
    a("s_nop 0\nv_add_f32 v7, v200, v201")
    for w in range(2, 8):
        a(f"v_add_f32 v7, v7, v{200+w}")
    a("v_rcp_f32 v7, v7\ns_nop 0")
    for w in range(8):
        a(f"v_mul_f32 v{200+w}, v{200+w}, v7\nv_cvt_pk_bf16_f32 v{200+w}, v{200+w}, v{200+w}\nv_and_b32 v{200+w}, s20, v{200+w}")
    for i in range(18):
        a(f"v_mov_b32 v{180+i}, 0")
    for w in range(8):
        for i in range(9):
            k = 100 + 10 * w + i
            a(f"v_lshlrev_b32 v7, 16, v{k}\nv_and_b32 v8, s20, v{k}\nv_fmac_f32 v{180+2*i}, v7, v{200+w}\nv_fmac_f32 v{181+2*i}, v8, v{200+w}")
    for i in range(9):
        a(f"v_cvt_pk_bf16_f32 v{10+i}, v{180+2*i}, v{181+2*i}")
    a("buffer_store_dwordx4 v[10:13], v5, s[12:15], 0 offen\nbuffer_store_dwordx4 v[14:17], v5, s[12:15], 0 offen offset:16\nbuffer_store_dword v18, v5, s[12:15], 0 offen offset:32")
    if stamp:
        dostamp(a)
    a(f"L_end_{name}:\ns_endpgm")

def empty(a, name):
    a(f".globl {name}\n.p2align 8\n.type {name},@function\n{name}:\ns_endpgm")

def kd(name, vgpr=256):
    return f""".amdhsa_kernel {name}
  .amdhsa_next_free_vgpr {vgpr}
  .amdhsa_next_free_sgpr 96
  .amdhsa_accum_offset {vgpr}
  .amdhsa_group_segment_fixed_size 0
  .amdhsa_kernarg_size 48
  .amdhsa_user_sgpr_count 2
  .amdhsa_user_sgpr_kernarg_segment_ptr 1
  .amdhsa_system_sgpr_workgroup_id_x 1
.end_amdhsa_kernel
"""
def gen(nempty=0, stamp=False):
    a = A()
    gemm(a, "g1_kernel", ("x", 0), ("wqkv", 0), ("ws", QKV_OFF), 1728, 27, stamp)
    attn(a, "at_kernel", stamp)
    gemm(a, "g2_kernel", ("ws", O_OFF), ("wo", 0), ("out", 0), 576, 9, stamp)
    empty(a, "em_kernel")
    s = HDR
    s += "; @launch kernel=g1_kernel grid=(432,1,1) block=(256,1,1) lds=24576\n"
    s += "; @launch kernel=at_kernel grid=(256,1,1) block=(256,1,1) lds=0\n"
    s += "; @launch kernel=g2_kernel grid=(144,1,1) block=(256,1,1) lds=24576\n"
    for i in range(nempty):
        s += "; @launch kernel=em_kernel grid=(256,1,1) block=(256,1,1) lds=0\n"
    s += '.amdgcn_target "amdgcn-amd-amdhsa--gfx950"\n.text\n' + a.text()
    s += '.section .rodata,"a"\n'
    for n, v in [("g1_kernel", 128), ("at_kernel", 256), ("g2_kernel", 128), ("em_kernel", 32)]:
        if n == "em_kernel" and nempty == 0: continue
        s += ".p2align 6\n" + kd(n, v)
    return s
if __name__ == "__main__":
    open("simple0.s", "w").write(gen(0))
    open("simple1.s", "w").write(gen(1))
    open("simple4.s", "w").write(gen(4))
    open("simple0s.s", "w").write(gen(0, True))
```

```python
from simple import *
def touch(a, name):
    a(f".globl {name}\n.p2align 8\n.type {name},@function\n{name}:")
    a("s_load_dwordx4 s[4:7], s[0:1], 0\ns_load_dwordx4 s[32:35], s[0:1], 16\ns_load_dwordx4 s[36:39], s[0:1], 32")
    a(f"s_cmp_ge_u32 s2, 256\ns_cbranch_scc1 L_end_{name}")
    a("s_waitcnt lgkmcnt(0)")
    a("s_lshl_b32 s3, s2, 8\nv_add_u32 v1, s3, v0\nv_lshlrev_b32 v1, 6, v1")
    for i, (reg, size) in enumerate([(4, 2359296), (6, 1990656), (32, 663552)]):
        a(f"s_mov_b32 s8, s{reg}\ns_mov_b32 s9, s{reg+1}\ns_mov_b32 s10, {size}\ns_mov_b32 s11, 0x20000")
        a(f"buffer_load_dword v{2+i}, v1, s[8:11], 0 offen")
    a("s_waitcnt vmcnt(0)")
    a(f"L_end_{name}:\ns_endpgm")
def nops(a, name, n, loop):
    a(f".globl {name}\n.p2align 8\n.type {name},@function\n{name}:")
    if loop:
        a(f"s_mov_b32 s3, {n // 32}\nL_l_{name}:")
        for i in range(32): a("v_add3_u32 v1, v0, v0, v0")
        a(f"s_sub_u32 s3, s3, 1\ns_cmp_lg_u32 s3, 0\ns_cbranch_scc1 L_l_{name}")
    else:
        for i in range(n): a("v_add3_u32 v1, v0, v0, v0")
    a("s_endpgm")
def gen2(order, n=2048):
    a = A()
    gemm(a, "g1_kernel", ("x", 0), ("wqkv", 0), ("ws", QKV_OFF), 1728, 27, False)
    attn(a, "at_kernel", False)
    gemm(a, "g2_kernel", ("ws", O_OFF), ("wo", 0), ("out", 0), 576, 9, False)
    if "em" in order: empty(a, "em_kernel")
    if "to" in order: touch(a, "to_kernel")
    if "nl" in order: nops(a, "nl_kernel", n, True)
    if "ns" in order: nops(a, "ns_kernel", n, False)
    L = {"g1": (432, 24576, 128), "at": (256, 0, 256), "g2": (144, 24576, 128), "em": (256, 0, 32), "to": (256, 0, 32), "nl": (256, 0, 32), "ns": (256, 0, 32)}
    s = HDR
    for o in order:
        s += f"; @launch kernel={o}_kernel grid=({L[o][0]},1,1) block=(256,1,1) lds={L[o][1]}\n"
    s += '.amdgcn_target "amdgcn-amd-amdhsa--gfx950"\n.text\n' + a.text()
    s += '.section .rodata,"a"\n'
    for o in dict.fromkeys(order):
        s += ".p2align 6\n" + kd(o + "_kernel", L[o][2])
    return s
if __name__ == "__main__":
    b = ["g1", "at", "g2"]
    open("pA.s", "w").write(gen2(b))
    open("pB.s", "w").write(gen2(b + b))
    open("pC.s", "w").write(gen2(["to"] + b))
    open("pD.s", "w").write(gen2(b + ["ns"]))
    open("pE.s", "w").write(gen2(b + ["nl"]))
    open("pF.s", "w").write(gen2(["em"] + b))
```

```python
import re
TRANS = ("v_exp_f32", "v_log_f32", "v_rcp_f32", "v_rsq_f32", "v_sqrt_f32", "v_sin_f32", "v_cos_f32")
def regs(op):
    op = op.strip()
    op = re.sub(r"^-|^abs\(|\)$|^\|", "", op).strip("|")
    m = re.fullmatch(r"([vsa])\[(\d+):(\d+)\]", op)
    if m: return {f"{m.group(1)}{i}" for i in range(int(m.group(2)), int(m.group(3)) + 1)}
    m = re.fullmatch(r"([vsa])(\d+)", op)
    if m: return {op}
    if op == "vcc": return {"vcc"}
    if op == "exec": return {"exec"}
    if op == "m0": return {"m0"}
    return set()
class I:
    def __init__(self, line):
        self.line = line
        s = line.split(";")[0].strip()
        self.label = s.endswith(":")
        self.directive = s.startswith(".")
        self.mn = ""; self.w = set(); self.r = set(); self.cls = "none"; self.ws = 0
        self.a = self.b = self.c = set(); self.data = set()
        if not s or self.label or self.directive: return
        p = s.split(None, 1)
        mn = self.mn = re.sub(r"_e(32|64)$", "", p[0])
        ops = [x.strip() for x in p[1].split(",")] if len(p) > 1 else []
        if ops:
            last = ops[-1].split()
            ops[-1] = last[0]; mods = last[1:]
        else: mods = []
        self.mods = mods
        self.ws = 1
        R = [regs(o) for o in ops]
        U = lambda L: set().union(*L) if L else set()
        if mn == "s_nop":
            self.ws = int(ops[0], 0) + 1; self.cls = "nop"
        elif mn.startswith("v_mfma"):
            self.cls = "mfma"; self.w = R[0]; self.a, self.b, self.c = R[1], R[2], R[3]; self.r = U(R[1:])
            self.passes = 8 if "32x32" in mn else 4
        elif mn.startswith("v_permlane") and "swap" in mn:
            self.cls = "valu"; self.w = U(R); self.r = U(R)
        elif mn.startswith("v_"):
            self.cls = "valu"; self.w = set(R[0]); self.r = U(R[1:])
            if "_co_" in mn: self.w |= R[1]; self.r = U(R[2:])
            if mn.startswith(("v_fmac", "v_pk_fmac", "v_writelane", "v_dot2c")): self.r |= R[0]
            if mn.startswith("v_cmpx"): self.w |= {"exec"}
            self.dpp = any(m.startswith(("row_", "quad_perm", "wave_")) for m in mods)
        elif mn.startswith("ds_"):
            self.cls = "ds"
            if "read" in mn or "permute" in mn or "swizzle" in mn: self.w = R[0]; self.r = U(R[1:])
            else: self.r = U(R)
            if "addtid" in mn: self.r |= {"m0"}
        elif mn.startswith(("buffer_", "global_")):
            self.cls = "vmem"
            if "lds" in mods or "_lds_" in mn: self.r = U(R) | {"m0"}
            elif "load" in mn: self.w = R[0]; self.r = U(R[1:])
            else:
                self.r = U(R)
                if mn.endswith(("x3", "x4")): self.data = R[0] if mn.startswith("buffer") else R[1]
        elif mn.startswith("s_"):
            self.cls = "salu"
            if mn.startswith(("s_cmp", "s_cbranch", "s_branch", "s_waitcnt", "s_barrier", "s_sleep", "s_setprio", "s_endpgm", "s_bitcmp")):
                self.r = U(R)
            else:
                self.w = set(R[0]) if R else set(); self.r = U(R[1:])
                if "saveexec" in mn: self.w |= {"exec"}
def need(p, c):
    n = 0
    isv = lambda S: {x for x in S if x[0] in "va" and x != "vcc"}
    iss = lambda S: {x for x in S if x[0] == "s" or x == "vcc"}
    if p.cls == "valu":
        if c.cls == "mfma" and isv(p.w) & c.r: n = max(n, 2)
        if c.cls == "mfma" and "exec" in p.w: n = max(n, 4)
        if c.cls == "valu":
            if c.mn.startswith("v_permlane") and isv(p.w) & c.r: n = max(n, 2)
            if getattr(c, "dpp", False) and isv(p.w) & c.r: n = max(n, 2)
            if c.mn.startswith(("v_readfirstlane", "v_readlane")) and isv(p.w) & c.r: n = max(n, 1)
            if p.mn in TRANS and isv(p.w) & c.r: n = max(n, 1)
            if iss(p.w) & c.r: n = max(n, 4 if c.mn.startswith(("v_readlane", "v_writelane")) else 2)
        if c.cls == "vmem" and iss(p.w) & c.r: n = max(n, 5)
        if c.cls == "salu" and iss(p.w) & c.r: n = max(n, 1)
    if p.cls == "mfma":
        t = {4: (6, 8, 3), 8: (10, 12, 7)}[p.passes]
        if c.cls == "mfma":
            if p.w & c.c and (p.w != c.c or p.passes != c.passes): n = max(n, t[0])
            if p.w & (c.a | c.b): n = max(n, t[1])
            if p.w & c.w and not (p.w & c.c): n = max(n, t[0])
        elif c.cls in ("valu", "ds", "vmem"):
            if p.w & (c.r | c.w): n = max(n, t[1])
            if c.cls == "valu" and p.c & c.w: n = max(n, t[2])
    if p.cls == "salu" and "m0" in p.w and "m0" in c.r and c.cls in ("vmem", "ds"): n = max(n, 1)
    if p.cls == "vmem" and p.data & c.w: n = max(n, 2)
    return n
def fix(lines, verbose=False):
    out = []
    tot = 0
    for line in lines:
        c = I(line)
        if c.ws:
            d = 0; req = 0
            for p in reversed(out):
                if p.mn in ("s_branch", "s_endpgm", "s_setpc_b64"): break
                if d >= 13: break
                if p.ws:
                    req = max(req, need(p, c) - d)
                    d += p.ws
            if req > 0:
                tot += req
                if verbose: print("nop", req, "before", line.strip())
                out.append(I(f"    s_nop {req-1}"))
        out.append(c)
    return [x.line for x in out], tot
```

```python
import sys, math, struct
from asmlib import *
import hz

SLOT = 36864
WOB = SLOT
XB = 3 * SLOT
TB = 4 * SLOT
FL = TB + 12288
GSZ = 9 * 18432
STAMP_OFF = 128 << 20
NEGINF = "0xff800000"
CEXP = struct.unpack("<I", struct.pack("<f", 18 ** -0.5 * math.log2(math.e)))[0]

def vr(b, n=1):
    return f"v{b}" if n == 1 else f"v[{b}:{b+n-1}]"

class W(A):
    def __init__(self):
        super().__init__(); self.lq = []; self.vq = []
    def reset(self):
        self.lq = []; self.vq = []
    def e(self, s):
        for x in s.split("\n"):
            x = x.strip()
            if not x: continue
            i = hz.I(x)
            touch = i.r | i.w
            wl = wv = None
            for k, q in enumerate(self.lq):
                if q & touch: wl = k
            for k, q in enumerate(self.vq):
                if q & touch: wv = k
            ws = []
            if wv is not None:
                n = len(self.vq) - 1 - wv; ws.append(f"vmcnt({min(n, 62)})"); self.vq = self.vq[wv + 1:]
            if wl is not None:
                n = len(self.lq) - 1 - wl; ws.append(f"lgkmcnt({min(n, 14)})"); self.lq = self.lq[wl + 1:]
            if ws: self("s_waitcnt " + " ".join(ws))
            self(x)
            if i.cls == "ds": self.lq.append(set(i.w))
            if i.cls == "vmem": self.vq.append(set(i.w))
    def lgkm0(self):
        if self.lq: self("s_waitcnt lgkmcnt(0)")
        self.lq = []

def sdiv(a, q, r, x, d, tmp):
    m = (1 << 16) // d + 1
    a(f"s_mul_i32 {q}, {x}, {m}\ns_lshr_b32 {q}, {q}, 16\ns_mul_i32 {tmp}, {q}, {d}\ns_sub_u32 {r}, {x}, {tmp}")

sX, sWq, sWo, sOut, sEx, sDbg = 4, 8, 12, 16, 20, 24
S_XCD, S_SLOT, S_RGL, S_J, S_W, S_G, S_GI, S_ROW0 = "s28", "s29", "s30", "s31", "s32", "s33", "s34", "s35"
S_C, S_A, S_B, S_LB, S_FLAGV, S_COL = "s36", "s37", "s38", "s39", "s40", "s41"
T0, T1, T2, T3 = "s42", "s43", "s44", "s45"
S_Q = 48
S_SP = "s57"
SPIN = f"s_add_u32 {S_SP}, {S_SP}, 1\ns_cmp_ge_u32 {S_SP}, 0x40000\ns_cbranch_scc1 "
S_WS = 58
S_ST = 60
def srd(b): return f"s[{b}:{b+3}]"

vL = 0
vM, vCs, vCp, vMs, vMp = 2, 10, 14, 18, 20
vXs, vXp, vP1s, vP1l, vP1r, vO, vPoll = 22, 23, 24, 25, 26, 27, 28
vWO = 29
vTw, vTr, vSt = 33, 34, 35
vT = 37
vA, vB, vWoG, vFl = 48, 51, 53, 54
vRA, vRB, vXw = 48, 52, 54
ACC = 56; FR = 128

def gen(D=12, PB=12, fine=(0, 8), cx=1, cj=0, help="XWo", stamp=False, wo_pre=6, force_sc1=False, out_mod="", initdelay=0, npre=4):
    a = W()
    ns = [0]
    def st():
        if stamp:
            a(f"s_memrealtime s[{S_ST+2*ns[0]}:{S_ST+2*ns[0]+1}]")
        ns[0] += 1
    def stl():
        if stamp:
            a.lgkm0(); st(); a("s_waitcnt lgkmcnt(0)")
        else: ns[0] += 1
    st()
    a(f"s_load_dwordx2 s[{sX}:{sX+1}], s[0:1], 0\ns_load_dwordx2 s[{sWq}:{sWq+1}], s[0:1], 8\ns_load_dwordx2 s[{sWo}:{sWo+1}], s[0:1], 16")
    a(f"s_load_dwordx2 s[{sOut}:{sOut+1}], s[0:1], 24\ns_load_dwordx2 s[{sDbg}:{sDbg+1}], s[0:1], 32\ns_load_dwordx2 s[{S_WS}:{S_WS+1}], s[0:1], 40")
    a("s_cmp_ge_u32 s2, 256\ns_cbranch_scc1 L_end")
    a(f"s_getpc_b64 s[46:47]\ns_and_b32 {T0}, s2, 0x78\nv_cmp_gt_u32 vcc, 8, v0\nv_add_lshl_u32 v2, v0, {T0}, 7\ns_and_saveexec_b64 s[44:45], vcc\ns_cbranch_execz L_nopf")
    a(f"global_load_dword v{vXw+1}, v2, s[46:47]\nL_nopf:\ns_mov_b64 exec, -1")
    a(f"v_lshrrev_b32 v1, 6, v0\ns_and_b32 {S_XCD}, s2, 7\nv_readfirstlane_b32 {S_W}, v1\ns_lshr_b32 {S_SLOT}, s2, 3\nv_and_b32 v{vL}, 63, v0")
    a(f"s_mov_b32 s{sX+2}, 2359296\ns_mov_b32 s{sX+3}, 0x20000\ns_mov_b32 s{sWq+2}, 1990656\ns_mov_b32 s{sWq+3}, 0x20000")
    a(f"s_mov_b32 s{sWo+2}, 663552\ns_mov_b32 s{sWo+3}, 0x20000")
    a(f"s_cmp_ge_u32 {S_SLOT}, 27\ns_cbranch_scc0 L_work")
    a(f"s_sub_u32 {T0}, {S_SLOT}, 27\ns_mul_i32 {T1}, {S_W}, 5\ns_add_u32 {T0}, {T0}, {T1}\ns_lshl_b32 {T0}, {T0}, 6\nv_add_u32 v2, {T0}, v{vL}")
    T = 2560; r = 10
    emit = []
    for h in help:
        if h == "X":
            a(f"s_lshr_b32 {T0}, {S_XCD}, 1\ns_mul_i32 {T0}, {T0}, 510\ns_and_b32 {T1}, {S_XCD}, 1\ns_add_u32 {T0}, {T0}, {T1}\ns_mul_i32 {T1}, {S_XCD}, {cx}\ns_add_u32 {T1}, {T1}, 1")
            a(f"v_mul_u32_u24 v5, {(1<<20)//262+1}, v2\nv_lshrrev_b32 v5, 20, v5\nv_mul_u32_u24 v6, 262, v5\nv_sub_u32 v6, v2, v6")
            a(f"v_lshl_add_u32 v6, v6, 1, {T0}\nv_mul_u32_u24 v6, 1152, v6")
            a(f"v_cmp_gt_u32 vcc, 8, v5\nv_add_u32 v5, {T1}, v5\nv_subrev_u32 v7, 9, v5\nv_min_u32 v5, v5, v7\nv_lshl_add_u32 v6, v5, 7, v6\nv_cndmask_b32 v{r}, -1, v6, vcc")
            emit.append(f"buffer_load_dword v{r}, v{r}, {srd(sX)}, 0 offen"); r += 1
        if h == "W":
            assert cj == 0
            a(f"s_mul_i32 {T0}, {S_XCD}, 216\ns_add_u32 {T0}, {T0}, {512*27}\nv_cmp_gt_u32 vcc, 216, v2\nv_add_lshl_u32 v5, v2, {T0}, 7\nv_cndmask_b32 v{r}, -1, v5, vcc")
            emit.append(f"buffer_load_dword v{r}, v{r}, {srd(sWq)}, 0 offen"); r += 1
        if h == "o":
            a(f"v_sub_u32 v5, {T-1}, v2\nv_cmp_gt_u32 vcc, 648, v5\ns_mul_i32 {T0}, {S_XCD}, 648\nv_add_lshl_u32 v5, v5, {T0}, 7\nv_cndmask_b32 v{r}, -1, v5, vcc")
            emit.append(f"buffer_load_dword v{r}, v{r}, {srd(sWo)}, 0 offen"); r += 1
    a("s_waitcnt lgkmcnt(0)")
    for x in emit: a(x)
    if stamp:
        ns[0] = 1
        st(); a("s_waitcnt vmcnt(0)"); st(); a("s_branch L_fin")
    else:
        a("s_endpgm")
    a("L_work:")
    ns[0] = 1
    sdiv(a, S_RGL, S_J, S_SLOT, 9, T0)
    a(f"s_lshr_b32 {S_GI}, {S_XCD}, 1\ns_mul_i32 {S_GI}, {S_GI}, 3\ns_add_u32 {S_GI}, {S_GI}, {S_RGL}")
    a(f"s_mul_i32 {S_ROW0}, {S_GI}, 170\ns_and_b32 {T0}, {S_XCD}, 1\ns_add_u32 {S_ROW0}, {S_ROW0}, {T0}")
    a(f"s_cmp_lt_u32 {S_W}, 4\ns_cbranch_scc1 L_comp")

    def common_setup():
        a(f"s_mul_i32 {S_G}, {S_XCD}, 3\ns_add_u32 {S_G}, {S_G}, {S_RGL}\ns_mov_b32 {S_SP}, 0")
        a(f"s_mov_b32 s{sOut+2}, 2359296\ns_mov_b32 s{sOut+3}, 0x20000\ns_mov_b32 s{sDbg+2}, 256\ns_mov_b32 s{sDbg+3}, 0x20000")
        a(f"s_mul_i32 {T0}, {S_G}, {GSZ}\ns_add_u32 s{sEx}, s{S_WS}, {T0}\ns_addc_u32 s{sEx+1}, s{S_WS+1}, 0\ns_mov_b32 s{sEx+2}, {GSZ}\ns_mov_b32 s{sEx+3}, 0x20000")
        a(f"s_getreg_b32 {T0}, hwreg(HW_REG_XCC_ID, 0, 4)\ns_mul_i32 {T1}, {T0}, {T0}\ns_lshl_b32 {T1}, {T1}, 16\ns_lshl_b32 {T0}, {T0}, 8\ns_add_u32 {T0}, {T0}, {T1}\ns_add_u32 {S_FLAGV}, {T0}, 1")
    def flag_off(v):
        a(f"s_and_b32 {T0}, {S_G}, 1\ns_lshl_b32 {T0}, {T0}, 7\ns_lshr_b32 {T1}, {S_G}, 1\ns_lshl_b32 {T1}, {T1}, 3\ns_add_u32 {T0}, {T0}, {T1}\nv_mov_b32 v{v}, {T0}")
    def attn_consts():
        t0, t1, t2, t3, t4, t5 = range(vT, vT + 6)
        a(f"v_and_b32 v{t0}, 15, v{vL}\nv_lshrrev_b32 v{t1}, 4, v{vL}\nv_lshrrev_b32 v{t2}, 1, v{t0}\nv_and_b32 v{t4}, 1, v{vL}")
        a(f"v_lshlrev_b32 v{t5}, 4, v{t4}\nv_mov_b32 v{t3}, 0xffff\nv_lshlrev_b32 v{t3}, v{t5}, v{t3}")
        a(f"s_cmp_eq_u32 {S_W}, 0\ns_cselect_b32 {T0}, 16, 0\nv_lshrrev_b32 v{t4}, {T0}, v{t3}")
        for d in range(2):
            a(f"v_lshl_add_u32 v{t5}, v{t1}, 1, {d}\nv_cmp_le_u32 vcc, v{t5}, v{t2}")
            a(f"v_cndmask_b32 v{vMs+d}, 0, v{t3}, vcc\nv_cndmask_b32 v{vMp+d}, v{t4}, 0, vcc")
        a(f"v_mov_b32 v{t5}, {NEGINF}")
        for (m, c) in ((vMs, vCs), (vMp, vCp)):
            for d in range(2):
                a(f"v_cmp_eq_u32 vcc, 0xffff, v{m+d}\nv_cndmask_b32 v{c+2*d}, v{t5}, 0, vcc")
                a(f"v_cmp_eq_u32 vcc, 0xffff0000, v{m+d}\nv_cndmask_b32 v{c+2*d+1}, v{t5}, 0, vcc")
        a(f"s_lshl_b32 {T1}, {S_J}, 2")
        sdiv(a, T0, T1, T1, 9, T2)
        for t in range(4):
            for d in range(2):
                a(f"v_lshl_add_u32 v{t5}, v{t1}, 1, {d}\nv_cmp_gt_u32 vcc, {T1}, v{t5}\nv_cndmask_b32 v{vM+2*t+d}, 0, -1, vcc")
            if t < 3: a(f"s_add_u32 {T1}, {T1}, 1\ns_cmp_eq_u32 {T1}, 9\ns_cselect_b32 {T1}, 0, {T1}")
        a(f"s_mul_i32 {T0}, {S_W}, 6144\ns_add_u32 {T0}, {T0}, {XB}\nv_lshl_add_u32 v{vXs}, v{vL}, 3, {T0}")
        a(f"s_sub_u32 {T0}, {T0}, 6144\ns_cmp_eq_u32 {S_W}, 0\ns_cselect_b32 {T0}, {XB + 5*6144}, {T0}\nv_lshl_add_u32 v{vXp}, v{vL}, 3, {T0}")
        a(f"s_mul_i32 {T0}, {S_J}, 18432\ns_lshl_b32 {T1}, {S_W}, 10\ns_add_u32 {T1}, {T1}, {T0}\ns_add_u32 {T1}, {T1}, 12288\nv_lshl_add_u32 v{vP1s}, v{vL}, 3, {T1}")
        a(f"v_add_u32 v{vP1r}, 18432, v{vP1s}")
        a(f"s_sub_u32 {T1}, {T1}, {18432-512}\ns_cmp_eq_u32 {S_J}, 0\ns_cselect_b32 {T1}, 0x40000000, {T1}\nv_lshl_add_u32 v{vP1l}, v{vL}, 3, {T1}")
        a(f"s_lshl_b32 {T1}, {S_W}, 11\nv_lshl_add_u32 v{vO}, v{vL}, 4, {T1}")
        a(f"s_mov_b32 s{S_Q}, {T0}")
        for q in range(1, 9):
            a(f"s_add_u32 s{S_Q+q}, s{S_Q+q-1}, 18432\ns_cmp_eq_u32 s{S_Q+q}, {GSZ}\ns_cselect_b32 s{S_Q+q}, 0, s{S_Q+q}")
        a(f"v_lshrrev_b32 v{t4}, 1, v{vL}\nv_mul_u32_u24 v{t5}, 18432, v{t4}\nv_cmp_eq_u32 vcc, {S_J}, v{t4}\nv_and_b32 v{t4}, 1, v{vL}\nv_lshl_add_u32 v{t5}, v{t4}, 10, v{t5}")
        a(f"s_add_u32 {T1}, {T1}, 1020\nv_add_u32 v{t5}, {T1}, v{t5}\nv_bfrev_b32 v{t4}, 1\nv_cndmask_b32 v{vPoll}, v{t5}, v{t4}, vcc")
        a(f"v_lshrrev_b32 v{t4}, 2, v{vL}\nv_lshlrev_b32 v{t5}, 7, v{t4}\nv_lshrrev_b32 v{t4}, 1, v{t4}\nv_and_b32 v{t4}, 3, v{t4}\nv_lshl_add_u32 v{t5}, v{t4}, 5, v{t5}")
        a(f"v_and_b32 v{t4}, 3, v{vL}\nv_lshl_add_u32 v{t5}, v{t4}, 3, v{t5}\nv_add_u32 v{vWO}, {WOB}, v{t5}")
        for t in range(1, 4): a(f"v_xor_b32 v{vWO+t}, {32*t}, v{vWO}")
        a(f"s_lshl_b32 {T1}, {S_W}, 11\ns_add_u32 {T1}, {T1}, {TB}")
        a(f"v_lshrrev_b32 v{t4}, 1, v{t1}\nv_xor_b32 v{t4}, v{t4}, v{t0}\nv_and_b32 v{t4}, 7, v{t4}\nv_lshlrev_b32 v{t4}, 4, v{t4}\nv_lshl_add_u32 v{t4}, v{t0}, 7, v{t4}")
        a(f"v_and_b32 v{t5}, 1, v{t1}\nv_lshl_add_u32 v{t4}, v{t5}, 3, v{t4}\nv_add_u32 v{vTw}, {T1}, v{t4}")
        a(f"v_lshrrev_b32 v{t4}, 3, v{vL}\nv_xor_b32 v{t5}, v{t4}, v{vL}\nv_and_b32 v{t5}, 7, v{t5}\nv_lshlrev_b32 v{t5}, 4, v{t5}\nv_lshl_add_u32 v{t5}, v{t4}, 7, v{t5}\nv_add_u32 v{vTr}, {T1}, v{t5}")
        a(f"v_and_b32 v{t5}, 1, v{t4}\nv_mul_u32_u24 v{t5}, 48, v{t5}\nv_lshrrev_b32 v{t4}, 1, v{t4}\ns_lshl_b32 {T1}, {S_W}, 3\nv_add3_u32 v{t4}, v{t4}, v{t5}, {T1}")
        a(f"v_and_b32 v{t5}, 7, v{vL}\ns_lshl_b32 {T1}, {S_J}, 7\nv_lshl_add_u32 v{t5}, v{t5}, 4, {T1}")
        a(f"s_cmp_eq_u32 {S_GI}, 0\ns_cselect_b32 {T2}, 0, 7\ns_sub_u32 {T3}, 92, {T2}\nv_bfrev_b32 v{t3}, 1")
        for h in range(2):
            if h: a(f"v_add_u32 v{t4}, 4, v{t4}")
            a(f"v_lshl_add_u32 v{t2}, v{t4}, 1, {S_ROW0}\nv_mul_u32_u24 v{t2}, 1152, v{t2}\nv_add_u32 v{t2}, v{t2}, v{t5}")
            a(f"v_subrev_u32 v{t1}, {T2}, v{t4}\nv_cmp_gt_u32 vcc, {T3}, v{t1}\nv_cndmask_b32 v{vSt+h}, v{t3}, v{t2}, vcc")

    bars = []
    for c in range(9):
        if c in fine: bars += [(9 * c + 6, 2 * c), (9 * c + 9, 2 * c + 1)]
        else: bars += [(9 * c + 9, 2 * c)]
    barsteps = {k for _, k in bars}

    t0, t1, t2, t3 = range(vT, vT + 4)
    a(f"s_sub_u32 {T0}, {S_W}, 4\ns_lshl_b32 {S_LB}, {T0}, 10\ns_and_b32 {T1}, {T0}, 1\ns_lshr_b32 {T2}, {T0}, 1")
    a(f"v_lshrrev_b32 v{t0}, 3, v{vL}\nv_and_b32 v{t1}, 1, v{t0}\nv_lshrrev_b32 v{t2}, 1, v{t0}\ns_lshl_b32 {T3}, {T1}, 2\nv_add_u32 v{t2}, {T3}, v{t2}")
    a(f"v_mul_u32_u24 v{t1}, 48, v{t1}\ns_lshl_b32 {T2}, {T2}, 3\nv_add3_u32 v{t1}, v{t1}, v{t2}, {T2}")
    a(f"v_xor_b32 v{t2}, v{t2}, v{vL}\nv_and_b32 v{t2}, 7, v{t2}\nv_cmp_gt_u32 vcc, 60, v{t1}\nv_lshl_add_u32 v{t1}, v{t1}, 1, {S_ROW0}\nv_mul_u32_u24 v{t1}, 1152, v{t1}")
    a(f"v_lshl_add_u32 v{vA}, v{t2}, 4, v{t1}\nv_add_u32 v{vA+1}, 36864, v{vA}\nv_add_u32 v{vA+2}, 73728, v{vA}\nv_bfrev_b32 v{t1}, 1\nv_cndmask_b32 v{vA+2}, v{t1}, v{vA+2}, vcc")
    a(f"v_and_b32 v{t1}, 2, v{t0}\nv_or_b32 v{t1}, {T3}, v{t1}\nv_xor_b32 v{t1}, v{t1}, v{vL}\nv_and_b32 v{t1}, 7, v{t1}")
    a(f"s_lshl_b32 {T0}, {T0}, 3\nv_add_u32 v{t3}, {T0}, v{t0}\nv_mul_u32_u24 v{t2}, 3456, v{t3}\ns_lshl_b32 {T2}, {S_J}, 7\nv_lshl_add_u32 v{t1}, v{t1}, 4, {T2}\nv_add_u32 v{vB}, v{t1}, v{t2}\nv_add_u32 v{vB+1}, {32*3456}, v{vB}")
    if cj:
        a(f"s_mul_i32 {T0}, {S_XCD}, {cx}\ns_mul_i32 {T1}, {S_J}, {cj}\ns_add_u32 {T0}, {T0}, {T1}")
        sdiv(a, T1, S_C, T0, 9, T3)
    else:
        a(f"s_mul_i32 {S_C}, {S_XCD}, {cx}")
    a("s_waitcnt lgkmcnt(0)")
    st()
    ops = []
    for c in range(9):
        sl = (c % 4) * SLOT
        ops.append(("N",))
        for n in range(3): ops.append(("L", vA + n, sX, S_A, 0, sl + n * 4096))
        for n in range(2):
            for sec in range(3): ops.append(("L", vB + n, sWq, S_B, sec * 1152, sl + 12288 + sec * 8192 + n * 4096))
        if c == 0: ops.append(("SETUP",))
        if c == 6: ops.append(("POLL",))
    for n in range(wo_pre):
        ops.append(("WO", n))
    i = 0; extra = []
    seq = []
    def landed_after_wait(nout):
        return sum(1 for k in seq[:len(seq) - nout] if k == "L")
    bi = 0; pollpos = None; polldone = False
    def after_wait(nout):
        nonlocal bi, polldone
        if pollpos is not None and not polldone and len(seq) - nout > pollpos:
            polldone = True
            a(f"s_mul_i32 {T1}, {S_FLAGV}, 9\nL_fl:\nv_readfirstlane_b32 {T0}, v{vFl+1}\ns_and_b32 {T2}, {T0}, 0xff\ns_cmp_eq_u32 {T2}, 9\ns_cbranch_scc1 L_fl_ok")
            a(SPIN + "L_fl_ok")
            a(f"s_sleep 4\nbuffer_load_dword v{vFl+1}, v{vFl}, {srd(sDbg)}, 0 offen sc1\ns_waitcnt vmcnt(0)\ns_branch L_fl\nL_fl_ok:")
            a(f"s_cmp_eq_u32 {T0}, {T1}\ns_cselect_b32 {T0}, {0 if force_sc1 else 1}, 0\nv_mov_b32 v{vFl+1}, {T0}\nv_mov_b32 v{vFl}, {FL}\nds_write_b32 v{vFl}, v{vFl+1}\ns_waitcnt lgkmcnt(0)")
        while bi < len(bars) and landed_after_wait(nout) >= bars[bi][0]:
            a("s_barrier"); bi += 1
    def wo_issue(n, wait):
        q, h = n >> 1, n & 1
        a(f"s_lshl_b32 {S_A}, s{S_Q+q}, 2")
        if h: a(f"s_add_u32 {S_A}, {S_A}, 36864")
        a(f"s_add_u32 m0, {S_LB}, {WOB + n*4096}")
        wait()
        a(f"buffer_load_dwordx4 v{vWoG}, {srd(sWo)}, {S_A} offen lds")
    for o in ops:
        if o[0] == "N":
            a(f"s_lshl_b32 {S_A}, {S_C}, 7\ns_mul_i32 {S_B}, {S_C}, {64*3456}\ns_add_u32 {S_C}, {S_C}, 1\ns_cmp_eq_u32 {S_C}, 9\ns_cselect_b32 {S_C}, 0, {S_C}")
        elif o[0] == "SETUP":
            a(f"v_lshrrev_b32 v{t1}, 3, v{vL}\nv_and_b32 v{t1}, 6, v{t1}\nv_xor_b32 v{t1}, v{t1}, v{vL}\nv_and_b32 v{t1}, 7, v{t1}\nv_lshl_add_u32 v{t1}, v{t1}, 4, {T2}\nv_mul_u32_u24 v{t3}, 1152, v{t3}\nv_add_u32 v{vWoG}, v{t1}, v{t3}")
            setup_pending = True
        elif o[0] == "POLL":
            a(f"buffer_load_dword v{vFl+1}, v{vFl}, {srd(sDbg)}, 0 offen sc1")
            pollpos = len(seq); seq.append("P")
        else:
            def wait():
                if len(seq) >= D:
                    a(f"s_waitcnt vmcnt({D-1})"); after_wait(D - 1)
            if len(seq) == D:
                common_setup(); flag_off(vFl); attn_consts()
            if o[0] == "L":
                _, v, s, so, off, dst = o
                a(f"s_add_u32 m0, {S_LB}, {dst - off}")
                wait()
                a(f"buffer_load_dwordx4 v{v}, {srd(s)}, {so} offen" + (f" offset:{off}" if off else "") + " lds")
                seq.append("L")
            else:
                wo_issue(o[1], wait); seq.append("W")
    while bi < len(bars):
        nout = max(n for n in range(len(seq) + 1) if landed_after_wait(n) >= bars[bi][0])
        a(f"s_waitcnt vmcnt({nout})"); after_wait(nout)
    assert polldone
    st()
    a(f"s_cmp_lt_u32 {S_W}, 6\ns_cbranch_scc1 L_attn")
    a("s_barrier")
    a(f"v_add_u32 v{vWoG+2}, {-16*1152 & 0xffffffff}, v{vWoG}")
    for n in range(wo_pre, 18):
        wo_issue(n, lambda: None)
        a(f"s_sub_u32 m0, m0, 2048\nbuffer_load_dwordx4 v{vWoG+2}, {srd(sWo)}, {S_A} offen lds")
    a("s_waitcnt vmcnt(0)")
    nsave = ns[0]
    st()
    a("s_barrier")
    a("s_branch L_fin")
    ns[0] = 1

    a(".p2align 6\nL_comp:")
    a(f"v_and_b32 v{t0}, 15, v{vL}\nv_lshrrev_b32 v{t1}, 4, v{vL}\nv_lshrrev_b32 v{t2}, 1, v{t0}\nv_xor_b32 v{t2}, v{t2}, v{t1}\nv_lshlrev_b32 v{t2}, 4, v{t2}")
    a(f"v_lshl_add_u32 v{vRA}, v{t0}, 7, v{t2}\nv_xor_b32 v{vRA+1}, 64, v{vRA}\nv_add_u32 v{vRA+2}, {2*SLOT}, v{vRA}\nv_add_u32 v{vRA+3}, {2*SLOT}, v{vRA+1}")
    a(f"v_bfe_u32 v{t0}, v{vL}, 2, 2\nv_lshl_add_u32 v{t2}, v{t1}, 3, v{t0}\nv_lshlrev_b32 v{t2}, 7, v{t2}\nv_bfe_u32 v{t0}, v{vL}, 3, 2\nv_xor_b32 v{t0}, {S_W}, v{t0}\nv_lshl_add_u32 v{t2}, v{t0}, 5, v{t2}")
    a(f"v_and_b32 v{t0}, 3, v{vL}\nv_lshl_add_u32 v{t2}, v{t0}, 3, v{t2}\nv_add_u32 v{vRB}, 12288, v{t2}\nv_add_u32 v{vRB+1}, {2*SLOT}, v{vRB}")
    a(f"s_lshl_b32 {T0}, {S_W}, 9\ns_add_u32 {T0}, {T0}, {XB}\nv_lshl_add_u32 v{vXw}, v{vL}, 3, {T0}")
    a("s_waitcnt lgkmcnt(0)")
    st()
    common_setup()
    def init_stores():
        a(f"s_mul_i32 {T0}, {S_J}, 18432\ns_lshl_b32 {T1}, {S_W}, 10\ns_add_u32 {T0}, {T0}, {T1}\nv_lshl_add_u32 v{FR+4}, v{vL}, 4, {T0}")
        for k in range(4): a(f"v_mov_b32 v{FR+k}, -1")
        for n in range(5):
            if n == 4: a(f"s_cmp_ge_u32 {S_W}, 2\ns_cbranch_scc1 L_ni")
            a(f"s_mov_b32 {T0}, {n*4096}\nbuffer_store_dwordx4 {vr(FR,4)}, v{FR+4}, {srd(sEx)}, {T0} offen sc1")
        a("L_ni:")
    if not initdelay: init_stores()
    attn_consts()
    if initdelay: init_stores()
    flag_off(vT + 8)
    a(f"v_mov_b32 v{vT+9}, {S_FLAGV}")
    def reads(s):
        c = s >> 1; sl = c % 4; F = FR + 36 * (s & 1)
        ra = vRA + 2 * (sl >> 1) + (s & 1); rb = vRB + (sl >> 1); o = (sl & 1) * SLOT
        A_ = lambda t: f"ds_read_b128 {vr(F+4*t,4)}, v{ra} offset:{o + t*2048}"
        B_ = lambda sec, h: f"ds_read_b64_tr_b16 {vr(F+24+4*sec+2*h,2)}, v{rb} offset:{o + sec*8192 + (s&1)*4096 + h*512}"
        return [B_(0,0), B_(0,1), A_(0), B_(1,0), B_(1,1), B_(2,0), B_(2,1)] + [A_(t) for t in range(1, 6)]
    def mfmas(s):
        F = FR + 36 * (s & 1); L = []
        for t in range(6):
            for sec in range(3):
                d = vr(ACC + 24 * sec + 4 * t, 4); x = vr(F + 4 * t, 4); w = vr(F + 24 + 4 * sec, 4)
                x, w = (w, x) if sec < 2 else (x, w)
                L.append(f"v_mfma_f32_16x16x32_bf16 {d}, {x}, {w}, {d if s else 0}")
        return L
    a.reset()
    a("s_waitcnt vmcnt(0) lgkmcnt(0)\ns_barrier")
    for r in reads(0): a.e(r)
    a(f"s_cmp_lg_u32 {S_W}, 0\ns_cbranch_scc1 L_noat\ns_mov_b64 exec, 1\nbuffer_atomic_add v{vT+9}, v{vT+8}, {srd(sDbg)}, 0 offen sc1\ns_mov_b64 exec, -1\nL_noat:")
    for s in range(18):
        M = mfmas(s)
        if s < 17:
            R = reads(s + 1)
            p0 = PB if (s + 1) in barsteps else 1
            per = -(-12 // (18 - p0))
            for k, m in enumerate(M):
                if k == p0 and (s + 1) in barsteps:
                    a.lgkm0(); a("s_barrier")
                if k >= p0:
                    for r in R[:per]: a.e(r)
                    R = R[per:]
                a.e(m)
            assert not R
        else:
            def fin(k):
                t, sec = divmod(k, 3); d = ACC + 24 * sec + 4 * t
                a.e(f"v_cvt_pk_bf16_f32 v{d}, v{d}, v{d+1}\nv_cvt_pk_bf16_f32 v{d+1}, v{d+2}, v{d+3}")
                a.e(f"ds_write_b64 v{vXw}, {vr(d,2)} offset:{t*6144 + sec*2048}")
            for k, m in enumerate(M):
                a.e(m)
                if k >= 3: fin(k - 3)
            for k in range(15, 18): fin(k)
    a.lgkm0()
    st()
    a("L_attn:")
    if stamp: a("s_waitcnt lgkmcnt(0)")
    a("s_barrier")
    a.reset()
    Q, K, KP, V = 48, 56, 64, 72
    QO = 88
    S = 104
    AB = 144
    RM = 154
    R_ = 158
    P = 170
    OL = 190
    OF = 48
    rd = lambda dst, base, sec, t: a.e(f"ds_read_b64 {vr(dst,2)}, v{base} offset:{sec*2048 + t*512}")
    a.e(f"v_mov_b32 v{R_}, {FL}\nds_read_b32 v{R_}, v{R_}")
    for t in (0, 3): rd(Q + 2 * t, vXs, 0, t); rd(K + 2 * t, vXs, 1, t); rd(KP + 2 * t, vXp, 1, t)
    for t in (1, 2): rd(Q + 2 * t, vXs, 0, t); rd(K + 2 * t, vXs, 1, t); rd(KP + 2 * t, vXp, 1, t)
    qL = lambda t, d: QO + 4 * t + d
    qR = lambda t, d: QO + 4 * t + 2 + d
    def maskq(t, side):
        for d in range(2):
            if side == "L": a.e(f"v_and_b32 v{qL(t,d)}, v{vM+2*t+d}, v{Q+2*t+d}")
            else: a.e(f"v_bfi_b32 v{qR(t,d)}, v{vM+2*t+d}, 0, v{Q+2*t+d}")
    def smfma(b):
        for (kk, c, o) in ((KP, vCp, 0), (K, vCs, 4)):
            d = vr(S + 8 * b + o, 4)
            if b == 0: a.e(f"v_mfma_f32_16x16x16_bf16 {d}, {vr(kk,2)}, {vr(QO,2)}, {vr(c,4)}")
            elif b == 4: a.e(f"v_mfma_f32_16x16x16_bf16 {d}, {vr(kk+6,2)}, {vr(QO+14,2)}, {vr(c,4)}")
            else: a.e(f"v_mfma_f32_16x16x32_bf16 {d}, {vr(kk+2*b-2,4)}, {vr(QO+4*b-2,4)}, {vr(c,4)}")
    def merge(b):
        s0 = S + 8 * b
        for d in range(2):
            a.e(f"v_max3_f32 v{AB+2*b+d}, v{s0+2*d}, v{s0+2*d+1}, v{s0+4+2*d}")
        for d in range(2):
            a.e(f"v_max_f32 v{AB+2*b+d}, v{AB+2*b+d}, v{s0+5+2*d}")
    a.e(f"v_readfirstlane_b32 {S_COL}, v{R_}")
    maskq(0, "L"); maskq(3, "R"); smfma(0); smfma(4)
    maskq(0, "R"); maskq(1, "L"); smfma(1)
    maskq(1, "R"); maskq(2, "L"); smfma(2)
    maskq(2, "R"); maskq(3, "L"); smfma(3)
    for t in range(4): rd(V + 4 * t, vXp, 2, t); rd(V + 4 * t + 2, vXs, 2, t)
    merge(0); merge(4)
    for r in (AB, AB + 1, AB + 8, AB + 9): a.e(f"v_min_u32 v{r}, -2, v{r}")
    def stores(L, tag):
        a(f"s_cmp_eq_u32 {S_COL}, 0\ns_cbranch_scc1 L_{tag}_s")
        for x in L: a(x)
        a(f"L_{tag}_b:")
        late.append((tag, L))
        for x in L: a.vq.append(set())
    late = []
    stores([f"buffer_store_dwordx2 {vr(AB,2)}, v{vP1s}, {srd(sEx)}, 0 offen", f"buffer_store_dwordx2 {vr(AB+8,2)}, v{vP1s}, {srd(sEx)}, 0 offen offset:512"], "p1")
    stl()
    merge(1); merge(2); merge(3)
    def red(op, heads, src, mid):
        if len(heads) == 2:
            x, y = src
            a.e(f"v_permlane16_swap_b32 v{x}, v{y}\n{op} v{x}, v{x}, v{y}\nv_mov_b32 v{y}, v{x}\nv_permlane32_swap_b32 v{x}, v{y}\n{op} v{x}, v{x}, v{y}")
            a.e(mid(x)); a.e(f"v_mov_b32 v{y}, v{x}\nv_permlane16_swap_b32 v{x}, v{y}")
        else:
            x, y, z, u = src
            a.e(f"v_mov_b32 v{u}, v{z}\nv_permlane16_swap_b32 v{x}, v{y}\nv_permlane16_swap_b32 v{z}, v{u}\n{op} v{x}, v{x}, v{y}\n{op} v{z}, v{z}, v{u}")
            a.e(f"v_permlane32_swap_b32 v{x}, v{z}\n{op} v{x}, v{x}, v{z}")
            a.e(mid(x)); a.e(f"v_mov_b32 v{z}, v{x}\nv_permlane32_swap_b32 v{x}, v{z}\nv_mov_b32 v{y}, v{x}\nv_permlane16_swap_b32 v{x}, v{y}")
    def softmax(heads):
        T = list(range(R_, R_ + 4))[:2 if len(heads) == 2 else 4]
        for k, b in enumerate(heads): a.e(f"v_max_f32 v{T[k]}, v{AB+2*b}, v{AB+2*b+1}")
        red("v_max_f32", heads, T, lambda x: f"v_mul_f32 v{x}, {T3}, v{x}")
        for k, b in enumerate(heads):
            for d in range(2): a.e(f"v_fma_f32 v{AB+2*b+d}, v{AB+2*b+d}, {T3}, -v{T[k]}")
        for k, b in enumerate(heads):
            for d in range(2): a.e(f"v_exp_f32 v{AB+2*b+d}, v{AB+2*b+d}")
        for k, b in enumerate(heads): a.e(f"v_add_f32 v{T[k]}, v{AB+2*b}, v{AB+2*b+1}")
        red("v_add_f32", heads, T, lambda x: f"v_rcp_f32 v{x}, v{x}")
        for k, b in enumerate(heads):
            for d in range(2): a.e(f"v_mul_f32 v{AB+2*b+d}, v{AB+2*b+d}, v{T[k]}")
        for k, b in enumerate(heads):
            for d in range(2): a.e(f"v_cvt_pk_bf16_f32 v{AB+2*b+d}, v{AB+2*b+d}, v{AB+2*b+d}")
        for k, b in enumerate(heads):
            for d in range(2): a.e(f"v_and_b32 v{P+4*b+d}, v{vMp+d}, v{AB+2*b+d}\nv_and_b32 v{P+4*b+2+d}, v{vMs+d}, v{AB+2*b+d}")
    def pv(t, side):
        b = t + side
        a.e(f"v_mfma_f32_16x16x32_bf16 {vr(OL+8*t+4*side,4)}, {vr(V+4*t,4)}, {vr(P+4*b,4)}, 0")
    def osel(t):
        o = OL + 8 * t
        for d in range(2):
            a.e(f"v_cvt_pk_bf16_f32 v{o+2*d}, v{o+2*d}, v{o+2*d+1}\nv_cvt_pk_bf16_f32 v{o+4+2*d}, v{o+4+2*d}, v{o+5+2*d}")
        for d in range(2):
            a.e(f"v_bfi_b32 v{o+2*d}, v{vM+2*t+d}, v{o+2*d}, v{o+4+2*d}\nv_min_u32 v{OF+2*t+d}, -2, v{o+2*d}")
    a(f"s_mov_b32 {T3}, {CEXP}")
    softmax([1, 2, 3])
    p1loads = f"buffer_load_dwordx2 {vr(RM,2)}, v{vP1l}, {srd(sEx)}, 0 offen sc1\nbuffer_load_dwordx2 {vr(RM+2,2)}, v{vP1r}, {srd(sEx)}, 0 offen sc1"
    a(p1loads)
    pv(0, 1); pv(1, 0); pv(1, 1); pv(2, 0); pv(2, 1); pv(3, 0)
    osel(1); osel(2)
    a.lgkm0()
    a(f"L_p1c:\ns_waitcnt vmcnt(0)\nv_max3_u32 v{R_+4}, v{RM}, v{RM+1}, v{RM+2}\nv_max_u32 v{R_+4}, v{R_+4}, v{RM+3}\nv_cmp_eq_u32 vcc, -1, v{R_+4}\ns_cbranch_vccnz L_p1r\nL_p1d:")
    a.reset()
    stl()
    for d in range(2): a.e(f"v_add_f32 v{AB+d}, v{AB+d}, v{RM+d}\nv_add_f32 v{AB+8+d}, v{AB+8+d}, v{RM+2+d}")
    softmax([0, 4])
    pv(0, 0); pv(3, 1)
    osel(0); osel(3)
    stores([f"buffer_store_dwordx4 {vr(OF,4)}, v{vO}, {srd(sEx)}, s{S_Q} offen", f"buffer_store_dwordx4 {vr(OF+4,4)}, v{vO}, {srd(sEx)}, s{S_Q} offen offset:1024"], "o")
    stl()
    OA = 120; BB = 136; NB = 7
    CK = 248
    a("s_barrier")
    poll = f"buffer_load_dword v{CK}, v{vPoll}, {srd(sEx)}, 0 offen sc1"
    a("L_p2:")
    a(poll)
    a.reset()
    def bread(n):
        L = []
        for t in range(4):
            for h in range(2):
                base = vWO + t if n < 9 else CK + 2 + t
                L.append(f"ds_read_b64_tr_b16 {vr(BB+16*(n%NB)+4*t+2*h,2)}, v{base} offset:{(n%9)*4096 + h*2048}")
        return L
    def m2(n):
        return [f"v_mfma_f32_16x16x32_bf16 {vr(OA+4*t,4)}, {vr(BB+16*(n%NB)+4*t,4)}, {vr(OF+4*n,4)}, {vr(OA+4*t,4) if n else 0}" for t in range(4)]
    for t in range(4): a.e(f"v_add_u32 v{CK+2+t}, {9*4096}, v{vWO+t}")
    for n in range(npre):
        for r in bread(n): a.e(r)
    nxt = npre
    for n in range(2):
        for m in m2(n): a.e(m)
    a.lgkm0()
    a(f"L_p2c:\ns_waitcnt vmcnt(0)\nv_cmp_eq_u32 vcc, -1, v{CK}\ns_cbranch_vccnz L_p2r\nL_p2d:")
    stl()
    for n in range(2, 18):
        a.e(f"buffer_load_dwordx4 {vr(OF+4*n,4)}, v{vO}, {srd(sEx)}, s{S_Q+(n>>1)} offen" + (" offset:1024" if n & 1 else "") + " sc1")
    while nxt < min(18, 2 + NB):
        for r in bread(nxt): a.e(r)
        nxt += 1
    a.e(f"v_mov_b32 v{CK}, 0")
    for n in range(2, 18):
        M = m2(n)
        R = bread(nxt) if (nxt < 18 and n > 2) else []
        if R: nxt += 1
        o = OF + 4 * n
        for k, m in enumerate(M):
            a.e(m)
            for r in R[2 * k:2 * k + 2]: a.e(r)
            if k < 2: a.e(f"v_max3_u32 v{CK}, v{CK}, v{o+2*k}, v{o+2*k+1}")
    assert nxt == 18
    a.e(f"v_cmp_eq_u32 vcc, -1, v{CK}")
    a("s_cbranch_vccnz L_p2x\nL_p2e:")
    stl()
    for t in range(1, 4): a.e(f"v_xor_b32 v{CK+t}, {32*t}, v{vTw}")
    for t in range(4):
        o = OA + 4 * t
        a.e(f"v_cvt_pk_bf16_f32 v{o}, v{o}, v{o+1}\nv_cvt_pk_bf16_f32 v{o+1}, v{o+2}, v{o+3}\nds_write_b64 v{CK+t if t else vTw}, {vr(o,2)}")
    for h in range(2): a.e(f"ds_read_b128 {vr(BB+4*h,4)}, v{vTr} offset:{h*1024}")
    for h in range(2): a.e(f"buffer_store_dwordx4 {vr(BB+4*h,4)}, v{vSt+h}, {srd(sOut)}, 0 offen {out_mod}")
    if stamp:
        st(); a("s_waitcnt vmcnt(0)"); st()
    a("L_fin:")
    if stamp:
        a(f"s_waitcnt lgkmcnt(0)\ns_lshl_b32 {T0}, s2, 3\ns_add_u32 {T0}, {T0}, {S_W}\ns_lshl_b32 {T0}, {T0}, 7\ns_add_u32 {T0}, {T0}, {STAMP_OFF}")
        a(f"s_add_u32 s46, s{S_WS}, {T0}\ns_addc_u32 s47, s{S_WS+1}, 0\nv_mov_b32 v1, 0")
        for k in range(12): a(f"v_mov_b32 v2, s{S_ST+2*k}\nglobal_store_dword v1, v2, s[46:47] offset:{4*k}")
    a("L_end:\ns_endpgm")
    for tag, L in late:
        a(f"L_{tag}_s:")
        for x in L: a(x + " sc1")
        a(f"s_branch L_{tag}_b")
    a("L_p1r:\n" + SPIN + "L_p1d\n" + p1loads + "\ns_branch L_p1c")
    a("L_p2r:\n" + SPIN + "L_p2d\n" + poll + "\ns_branch L_p2c")
    a("L_p2x:\n" + SPIN + "L_p2e\ns_branch L_p2")
    lines, tot = hz.fix(a.l)
    body = "\n".join(lines) + "\n.fill 4096, 4, 0xbf800000\n"
    return kernel_file(body, 256, 512, 163840, vgpr=256, sgpr=96)

if __name__ == "__main__":
    open("k1.s", "w").write(gen())
    open("k1s.s", "w").write(gen(stamp=True))
```

```python
import sys, math, struct
from asmlib import *
import hz

SLOT = 36864
WOB = SLOT
XB = 3 * SLOT
TB = 4 * SLOT
FL = TB + 12288
GSZ = 9 * 18432
STAMP_OFF = 128 << 20
NEGINF = "0xff800000"
CEXP = struct.unpack("<I", struct.pack("<f", 18 ** -0.5 * math.log2(math.e)))[0]

def vr(b, n=1):
    return f"v{b}" if n == 1 else f"v[{b}:{b+n-1}]"

class W(A):
    def __init__(self):
        super().__init__(); self.lq = []; self.vq = []
    def reset(self):
        self.lq = []; self.vq = []
    def e(self, s):
        for x in s.split("\n"):
            x = x.strip()
            if not x: continue
            i = hz.I(x)
            touch = i.r | i.w
            wl = wv = None
            for k, q in enumerate(self.lq):
                if q & touch: wl = k
            for k, q in enumerate(self.vq):
                if q & touch: wv = k
            ws = []
            if wv is not None:
                n = min(62, len(self.vq) - 1 - wv); ws.append(f"vmcnt({n})"); self.vq = self.vq[len(self.vq) - n:]
            if wl is not None:
                n = min(14, len(self.lq) - 1 - wl); ws.append(f"lgkmcnt({n})"); self.lq = self.lq[len(self.lq) - n:]
            if ws: self("s_waitcnt " + " ".join(ws))
            self(x)
            if i.cls == "ds": self.lq.append(set(i.w))
            if i.cls == "vmem": self.vq.append(set(i.w))
    def lgkm0(self):
        if self.lq: self("s_waitcnt lgkmcnt(0)")
        self.lq = []

def sdiv(a, q, r, x, d, tmp):
    m = (1 << 16) // d + 1
    a(f"s_mul_i32 {q}, {x}, {m}\ns_lshr_b32 {q}, {q}, 16\ns_mul_i32 {tmp}, {q}, {d}\ns_sub_u32 {r}, {x}, {tmp}")

sX, sWq, sWo, sOut, sEx, sDbg = 4, 8, 12, 16, 20, 24
S_XCD, S_SLOT, S_RGL, S_J, S_W, S_G, S_GI, S_ROW0 = "s28", "s29", "s30", "s31", "s32", "s33", "s34", "s35"
S_C, S_A, S_B, S_LB, S_FLAGV, S_COL = "s36", "s37", "s38", "s39", "s40", "s41"
T0, T1, T2, T3 = "s42", "s43", "s44", "s45"
S_Q = 48
S_SP = "s57"
SPIN = f"s_add_u32 {S_SP}, {S_SP}, 1\ns_cmp_ge_u32 {S_SP}, 0x40000\ns_cbranch_scc1 "
S_WS = 58
S_ST = 60
def srd(b): return f"s[{b}:{b+3}]"

vL = 0
vM, vCs, vCp, vMs, vMp = 2, 10, 14, 18, 20
vXs, vXp, vP1s, vP1l, vP1r, vO, vPoll = 22, 23, 24, 25, 26, 27, 28
vWO = 29
vTw, vTr, vSt = 33, 34, 35
vT = 37
vA, vB, vWoG, vFl = 48, 51, 53, 54
vRA, vRB, vXw = 48, 52, 54
ACC = 56; FR = 128

def gen(D=12, PB=12, fine=(0, 8), cx=1, cj=0, help="XWo", stamp=False, wo_pre=6, force_sc1=False, out_mod="", initdelay=0, npre=4, pad=None, sset='post', nomfma=False, noread=False, noinit=False, noatom=False, clk=False):
    a = W()
    ns = [0]
    def st(k="any"):
        if stamp and k in ("any", sset) and ns[0] < 15:
            a(("s_memtime" if clk else "s_memrealtime") + f" s[{S_ST+2*ns[0]}:{S_ST+2*ns[0]+1}]")
            ns[0] += 1
    def stl(k="post"):
        if stamp and k == sset:
            a.lgkm0(); st(); a("s_waitcnt lgkmcnt(0)")
    npad = [0]
    def dopad(where):
        if pad and pad[0] == where:
            npad[0] += 1
            a(f"s_waitcnt lgkmcnt(0)\nL_pad{npad[0]}:\ns_memrealtime s[92:93]\ns_waitcnt lgkmcnt(0)\ns_sub_u32 s92, s92, s90\ns_cmp_lt_u32 s92, {pad[1]}\ns_cbranch_scc1 L_pad{npad[0]}")
    if pad: a("s_memrealtime s[90:91]")
    st()
    a(f"s_load_dwordx2 s[{sX}:{sX+1}], s[0:1], 0\ns_load_dwordx2 s[{sWq}:{sWq+1}], s[0:1], 8\ns_load_dwordx2 s[{sWo}:{sWo+1}], s[0:1], 16")
    a(f"s_load_dwordx2 s[{sOut}:{sOut+1}], s[0:1], 24\ns_load_dwordx2 s[{sDbg}:{sDbg+1}], s[0:1], 32\ns_load_dwordx2 s[{S_WS}:{S_WS+1}], s[0:1], 40")
    a("s_cmp_ge_u32 s2, 256\ns_cbranch_scc1 L_end")
    a(f"s_getpc_b64 s[46:47]\ns_and_b32 {T0}, s2, 0x78\nv_cmp_gt_u32 vcc, 8, v0\nv_add_lshl_u32 v2, v0, {T0}, 7\ns_and_saveexec_b64 s[44:45], vcc\ns_cbranch_execz L_nopf")
    a(f"global_load_dword v{vXw+1}, v2, s[46:47]\nL_nopf:\ns_mov_b64 exec, -1")
    a(f"v_lshrrev_b32 v1, 6, v0\ns_and_b32 {S_XCD}, s2, 7\nv_readfirstlane_b32 {S_W}, v1\ns_lshr_b32 {S_SLOT}, s2, 3\nv_and_b32 v{vL}, 63, v0")
    a(f"s_mov_b32 s{sX+2}, 2359296\ns_mov_b32 s{sX+3}, 0x20000\ns_mov_b32 s{sWq+2}, 1990656\ns_mov_b32 s{sWq+3}, 0x20000")
    a(f"s_mov_b32 s{sWo+2}, 663552\ns_mov_b32 s{sWo+3}, 0x20000")
    a(f"s_cmp_ge_u32 {S_SLOT}, 27\ns_cbranch_scc0 L_work")
    a(f"s_sub_u32 {T0}, {S_SLOT}, 27\ns_mul_i32 {T1}, {S_W}, 5\ns_add_u32 {T0}, {T0}, {T1}\ns_lshl_b32 {T0}, {T0}, 6\nv_add_u32 v2, {T0}, v{vL}")
    T = 2560; r = 10
    emit = []
    for h in help:
        if h == "X":
            a(f"s_lshr_b32 {T0}, {S_XCD}, 1\ns_mul_i32 {T0}, {T0}, 510\ns_and_b32 {T1}, {S_XCD}, 1\ns_add_u32 {T0}, {T0}, {T1}\ns_mul_i32 {T1}, {S_XCD}, {cx}\ns_add_u32 {T1}, {T1}, 1")
            a(f"v_mul_u32_u24 v5, {(1<<20)//262+1}, v2\nv_lshrrev_b32 v5, 20, v5\nv_mul_u32_u24 v6, 262, v5\nv_sub_u32 v6, v2, v6")
            a(f"v_lshl_add_u32 v6, v6, 1, {T0}\nv_mul_u32_u24 v6, 1152, v6")
            a(f"v_cmp_gt_u32 vcc, 8, v5\nv_add_u32 v5, {T1}, v5\nv_subrev_u32 v7, 9, v5\nv_min_u32 v5, v5, v7\nv_lshl_add_u32 v6, v5, 7, v6\nv_cndmask_b32 v{r}, -1, v6, vcc")
            emit.append(f"buffer_load_dword v{r}, v{r}, {srd(sX)}, 0 offen"); r += 1
        if h == "W":
            assert cj == 0
            a(f"s_mul_i32 {T0}, {S_XCD}, 216\ns_add_u32 {T0}, {T0}, {512*27}\nv_cmp_gt_u32 vcc, 216, v2\nv_add_lshl_u32 v5, v2, {T0}, 7\nv_cndmask_b32 v{r}, -1, v5, vcc")
            emit.append(f"buffer_load_dword v{r}, v{r}, {srd(sWq)}, 0 offen"); r += 1
        if h == "o":
            a(f"v_sub_u32 v5, {T-1}, v2\nv_cmp_gt_u32 vcc, 648, v5\ns_mul_i32 {T0}, {S_XCD}, 648\nv_add_lshl_u32 v5, v5, {T0}, 7\nv_cndmask_b32 v{r}, -1, v5, vcc")
            emit.append(f"buffer_load_dword v{r}, v{r}, {srd(sWo)}, 0 offen"); r += 1
    a("s_waitcnt lgkmcnt(0)")
    for x in emit: a(x)
    if stamp:
        ns[0] = 1
        st(); a("s_waitcnt vmcnt(0)"); st(); a("s_branch L_fin")
    else:
        a("s_endpgm")
    a("L_work:")
    dopad("start")
    ns[0] = 1
    sdiv(a, S_RGL, S_J, S_SLOT, 9, T0)
    a(f"s_lshr_b32 {S_GI}, {S_XCD}, 1\ns_mul_i32 {S_GI}, {S_GI}, 3\ns_add_u32 {S_GI}, {S_GI}, {S_RGL}")
    a(f"s_mul_i32 {S_ROW0}, {S_GI}, 170\ns_and_b32 {T0}, {S_XCD}, 1\ns_add_u32 {S_ROW0}, {S_ROW0}, {T0}")
    a(f"s_cmp_lt_u32 {S_W}, 4\ns_cbranch_scc1 L_comp")

    def common_setup():
        a(f"s_mul_i32 {S_G}, {S_XCD}, 3\ns_add_u32 {S_G}, {S_G}, {S_RGL}\ns_mov_b32 {S_SP}, 0")
        a(f"s_mov_b32 s{sOut+2}, 2359296\ns_mov_b32 s{sOut+3}, 0x20000\ns_mov_b32 s{sDbg+2}, 256\ns_mov_b32 s{sDbg+3}, 0x20000")
        a(f"s_mul_i32 {T0}, {S_G}, {GSZ}\ns_add_u32 s{sEx}, s{S_WS}, {T0}\ns_addc_u32 s{sEx+1}, s{S_WS+1}, 0\ns_mov_b32 s{sEx+2}, {GSZ}\ns_mov_b32 s{sEx+3}, 0x20000")
        a(f"s_getreg_b32 {T0}, hwreg(HW_REG_XCC_ID, 0, 4)\ns_mul_i32 {T1}, {T0}, {T0}\ns_lshl_b32 {T1}, {T1}, 16\ns_lshl_b32 {T0}, {T0}, 8\ns_add_u32 {T0}, {T0}, {T1}\ns_add_u32 {S_FLAGV}, {T0}, 1")
    def flag_off(v):
        a(f"s_and_b32 {T0}, {S_G}, 1\ns_lshl_b32 {T0}, {T0}, 7\ns_lshr_b32 {T1}, {S_G}, 1\ns_lshl_b32 {T1}, {T1}, 3\ns_add_u32 {T0}, {T0}, {T1}\nv_mov_b32 v{v}, {T0}")
    def attn_consts():
        t0, t1, t2, t3, t4, t5 = range(vT, vT + 6)
        a(f"v_and_b32 v{t0}, 15, v{vL}\nv_lshrrev_b32 v{t1}, 4, v{vL}\nv_lshrrev_b32 v{t2}, 1, v{t0}\nv_and_b32 v{t4}, 1, v{vL}")
        a(f"v_lshlrev_b32 v{t5}, 4, v{t4}\nv_mov_b32 v{t3}, 0xffff\nv_lshlrev_b32 v{t3}, v{t5}, v{t3}")
        a(f"s_cmp_eq_u32 {S_W}, 0\ns_cselect_b32 {T0}, 16, 0\nv_lshrrev_b32 v{t4}, {T0}, v{t3}")
        for d in range(2):
            a(f"v_lshl_add_u32 v{t5}, v{t1}, 1, {d}\nv_cmp_le_u32 vcc, v{t5}, v{t2}")
            a(f"v_cndmask_b32 v{vMs+d}, 0, v{t3}, vcc\nv_cndmask_b32 v{vMp+d}, v{t4}, 0, vcc")
        a(f"v_mov_b32 v{t5}, {NEGINF}")
        for (m, c) in ((vMs, vCs), (vMp, vCp)):
            for d in range(2):
                a(f"v_cmp_eq_u32 vcc, 0xffff, v{m+d}\nv_cndmask_b32 v{c+2*d}, v{t5}, 0, vcc")
                a(f"v_cmp_eq_u32 vcc, 0xffff0000, v{m+d}\nv_cndmask_b32 v{c+2*d+1}, v{t5}, 0, vcc")
        a(f"s_lshl_b32 {T1}, {S_J}, 2")
        sdiv(a, T0, T1, T1, 9, T2)
        for t in range(4):
            for d in range(2):
                a(f"v_lshl_add_u32 v{t5}, v{t1}, 1, {d}\nv_cmp_gt_u32 vcc, {T1}, v{t5}\nv_cndmask_b32 v{vM+2*t+d}, 0, -1, vcc")
            if t < 3: a(f"s_add_u32 {T1}, {T1}, 1\ns_cmp_eq_u32 {T1}, 9\ns_cselect_b32 {T1}, 0, {T1}")
        a(f"s_mul_i32 {T0}, {S_W}, 6144\ns_add_u32 {T0}, {T0}, {XB}\nv_lshl_add_u32 v{vXs}, v{vL}, 3, {T0}")
        a(f"s_sub_u32 {T0}, {T0}, 6144\ns_cmp_eq_u32 {S_W}, 0\ns_cselect_b32 {T0}, {XB + 5*6144}, {T0}\nv_lshl_add_u32 v{vXp}, v{vL}, 3, {T0}")
        a(f"s_mul_i32 {T0}, {S_J}, 18432\ns_lshl_b32 {T1}, {S_W}, 10\ns_add_u32 {T1}, {T1}, {T0}\ns_add_u32 {T1}, {T1}, 12288\nv_lshl_add_u32 v{vP1s}, v{vL}, 3, {T1}")
        a(f"v_add_u32 v{vP1r}, 18432, v{vP1s}")
        a(f"s_sub_u32 {T1}, {T1}, {18432-512}\ns_cmp_eq_u32 {S_J}, 0\ns_cselect_b32 {T1}, 0x40000000, {T1}\nv_lshl_add_u32 v{vP1l}, v{vL}, 3, {T1}")
        a(f"s_lshl_b32 {T1}, {S_W}, 11\nv_lshl_add_u32 v{vO}, v{vL}, 4, {T1}")
        a(f"s_mov_b32 s{S_Q}, {T0}")
        for q in range(1, 9):
            a(f"s_add_u32 s{S_Q+q}, s{S_Q+q-1}, 18432\ns_cmp_eq_u32 s{S_Q+q}, {GSZ}\ns_cselect_b32 s{S_Q+q}, 0, s{S_Q+q}")
        a(f"v_lshrrev_b32 v{t4}, 1, v{vL}\nv_mul_u32_u24 v{t5}, 18432, v{t4}\nv_cmp_eq_u32 vcc, {S_J}, v{t4}\nv_and_b32 v{t4}, 1, v{vL}\nv_lshl_add_u32 v{t5}, v{t4}, 10, v{t5}")
        a(f"s_add_u32 {T1}, {T1}, 1020\nv_add_u32 v{t5}, {T1}, v{t5}\nv_bfrev_b32 v{t4}, 1\nv_cndmask_b32 v{vPoll}, v{t5}, v{t4}, vcc")
        a(f"v_lshrrev_b32 v{t4}, 2, v{vL}\nv_lshlrev_b32 v{t5}, 7, v{t4}\nv_lshrrev_b32 v{t4}, 1, v{t4}\nv_and_b32 v{t4}, 3, v{t4}\nv_lshl_add_u32 v{t5}, v{t4}, 5, v{t5}")
        a(f"v_and_b32 v{t4}, 3, v{vL}\nv_lshl_add_u32 v{t5}, v{t4}, 3, v{t5}\nv_add_u32 v{vWO}, {WOB}, v{t5}")
        for t in range(1, 4): a(f"v_xor_b32 v{vWO+t}, {32*t}, v{vWO}")
        a(f"s_lshl_b32 {T1}, {S_W}, 11\ns_add_u32 {T1}, {T1}, {TB}")
        a(f"v_lshrrev_b32 v{t4}, 1, v{t1}\nv_xor_b32 v{t4}, v{t4}, v{t0}\nv_and_b32 v{t4}, 7, v{t4}\nv_lshlrev_b32 v{t4}, 4, v{t4}\nv_lshl_add_u32 v{t4}, v{t0}, 7, v{t4}")
        a(f"v_and_b32 v{t5}, 1, v{t1}\nv_lshl_add_u32 v{t4}, v{t5}, 3, v{t4}\nv_add_u32 v{vTw}, {T1}, v{t4}")
        a(f"v_lshrrev_b32 v{t4}, 3, v{vL}\nv_xor_b32 v{t5}, v{t4}, v{vL}\nv_and_b32 v{t5}, 7, v{t5}\nv_lshlrev_b32 v{t5}, 4, v{t5}\nv_lshl_add_u32 v{t5}, v{t4}, 7, v{t5}\nv_add_u32 v{vTr}, {T1}, v{t5}")
        a(f"v_and_b32 v{t5}, 1, v{t4}\nv_mul_u32_u24 v{t5}, 48, v{t5}\nv_lshrrev_b32 v{t4}, 1, v{t4}\ns_lshl_b32 {T1}, {S_W}, 3\nv_add3_u32 v{t4}, v{t4}, v{t5}, {T1}")
        a(f"v_and_b32 v{t5}, 7, v{vL}\ns_lshl_b32 {T1}, {S_J}, 7\nv_lshl_add_u32 v{t5}, v{t5}, 4, {T1}")
        a(f"s_cmp_eq_u32 {S_GI}, 0\ns_cselect_b32 {T2}, 0, 7\ns_sub_u32 {T3}, 92, {T2}\nv_bfrev_b32 v{t3}, 1")
        for h in range(2):
            if h: a(f"v_add_u32 v{t4}, 4, v{t4}")
            a(f"v_lshl_add_u32 v{t2}, v{t4}, 1, {S_ROW0}\nv_mul_u32_u24 v{t2}, 1152, v{t2}\nv_add_u32 v{t2}, v{t2}, v{t5}")
            a(f"v_subrev_u32 v{t1}, {T2}, v{t4}\nv_cmp_gt_u32 vcc, {T3}, v{t1}\nv_cndmask_b32 v{vSt+h}, v{t3}, v{t2}, vcc")

    bars = []
    for c in range(9):
        if c in fine: bars += [(9 * c + 6, 2 * c), (9 * c + 9, 2 * c + 1)]
        else: bars += [(9 * c + 9, 2 * c)]
    barsteps = {k for _, k in bars}

    t0, t1, t2, t3 = range(vT, vT + 4)
    a(f"s_sub_u32 {T0}, {S_W}, 4\ns_lshl_b32 {S_LB}, {T0}, 10\ns_and_b32 {T1}, {T0}, 1\ns_lshr_b32 {T2}, {T0}, 1")
    a(f"v_lshrrev_b32 v{t0}, 3, v{vL}\nv_and_b32 v{t1}, 1, v{t0}\nv_lshrrev_b32 v{t2}, 1, v{t0}\ns_lshl_b32 {T3}, {T1}, 2\nv_add_u32 v{t2}, {T3}, v{t2}")
    a(f"v_mul_u32_u24 v{t1}, 48, v{t1}\ns_lshl_b32 {T2}, {T2}, 3\nv_add3_u32 v{t1}, v{t1}, v{t2}, {T2}")
    a(f"v_xor_b32 v{t2}, v{t2}, v{vL}\nv_and_b32 v{t2}, 7, v{t2}\nv_cmp_gt_u32 vcc, 60, v{t1}\nv_lshl_add_u32 v{t1}, v{t1}, 1, {S_ROW0}\nv_mul_u32_u24 v{t1}, 1152, v{t1}")
    a(f"v_lshl_add_u32 v{vA}, v{t2}, 4, v{t1}\nv_add_u32 v{vA+1}, 36864, v{vA}\nv_add_u32 v{vA+2}, 73728, v{vA}\nv_bfrev_b32 v{t1}, 1\nv_cndmask_b32 v{vA+2}, v{t1}, v{vA+2}, vcc")
    a(f"v_and_b32 v{t1}, 2, v{t0}\nv_or_b32 v{t1}, {T3}, v{t1}\nv_xor_b32 v{t1}, v{t1}, v{vL}\nv_and_b32 v{t1}, 7, v{t1}")
    a(f"s_lshl_b32 {T0}, {T0}, 3\nv_add_u32 v{t3}, {T0}, v{t0}\nv_mul_u32_u24 v{t2}, 3456, v{t3}\ns_lshl_b32 {T2}, {S_J}, 7\nv_lshl_add_u32 v{t1}, v{t1}, 4, {T2}\nv_add_u32 v{vB}, v{t1}, v{t2}\nv_add_u32 v{vB+1}, {32*3456}, v{vB}")
    if cj:
        a(f"s_mul_i32 {T0}, {S_XCD}, {cx}\ns_mul_i32 {T1}, {S_J}, {cj}\ns_add_u32 {T0}, {T0}, {T1}")
        sdiv(a, T1, S_C, T0, 9, T3)
    else:
        a(f"s_mul_i32 {S_C}, {S_XCD}, {cx}")
    a("s_waitcnt lgkmcnt(0)")
    st()
    ops = []
    for c in range(9):
        sl = (c % 4) * SLOT
        ops.append(("N",))
        for n in range(3): ops.append(("L", vA + n, sX, S_A, 0, sl + n * 4096))
        for n in range(2):
            for sec in range(3): ops.append(("L", vB + n, sWq, S_B, sec * 1152, sl + 12288 + sec * 8192 + n * 4096))
        if c == 0: ops.append(("SETUP",))
        if c == 6: ops.append(("POLL",))
    for n in range(wo_pre):
        ops.append(("WO", n))
    i = 0; extra = []
    seq = []
    def landed_after_wait(nout):
        return sum(1 for k in seq[:len(seq) - nout] if k == "L")
    bi = 0; pollpos = None; polldone = False
    def after_wait(nout):
        nonlocal bi, polldone
        if pollpos is not None and not polldone and len(seq) - nout > pollpos:
            polldone = True
            a(f"s_mul_i32 {T1}, {S_FLAGV}, 9\nL_fl:\nv_readfirstlane_b32 {T0}, v{vFl+1}\ns_and_b32 {T2}, {T0}, 0xff\ns_cmp_ge_u32 {T2}, {0 if noatom else 9}\ns_cbranch_scc1 L_fl_ok")
            a(SPIN + "L_fl_ok")
            a(f"s_sleep 4\nbuffer_load_dword v{vFl+1}, v{vFl}, {srd(sDbg)}, 0 offen sc1\ns_waitcnt vmcnt(0)\ns_branch L_fl\nL_fl_ok:")
            a(f"s_cmp_eq_u32 {T0}, {T1}\ns_cselect_b32 {T0}, {0 if force_sc1 else 1}, {1 if noatom else 0}\nv_mov_b32 v{vFl+1}, {T0}\nv_mov_b32 v{vFl}, {FL}\nds_write_b32 v{vFl}, v{vFl+1}\ns_waitcnt lgkmcnt(0)")
        while bi < len(bars) and landed_after_wait(nout) >= bars[bi][0]:
            st("gemm"); a("s_barrier"); bi += 1
    def wo_issue(n, wait):
        q, h = n >> 1, n & 1
        a(f"s_lshl_b32 {S_A}, s{S_Q+q}, 2")
        if h: a(f"s_add_u32 {S_A}, {S_A}, 36864")
        a(f"s_add_u32 m0, {S_LB}, {WOB + n*4096}")
        wait()
        a(f"buffer_load_dwordx4 v{vWoG}, {srd(sWo)}, {S_A} offen lds")
    for o in ops:
        if o[0] == "N":
            a(f"s_lshl_b32 {S_A}, {S_C}, 7\ns_mul_i32 {S_B}, {S_C}, {64*3456}\ns_add_u32 {S_C}, {S_C}, 1\ns_cmp_eq_u32 {S_C}, 9\ns_cselect_b32 {S_C}, 0, {S_C}")
        elif o[0] == "SETUP":
            a(f"v_lshrrev_b32 v{t1}, 3, v{vL}\nv_and_b32 v{t1}, 6, v{t1}\nv_xor_b32 v{t1}, v{t1}, v{vL}\nv_and_b32 v{t1}, 7, v{t1}\nv_lshl_add_u32 v{t1}, v{t1}, 4, {T2}\nv_mul_u32_u24 v{t3}, 1152, v{t3}\nv_add_u32 v{vWoG}, v{t1}, v{t3}")
            setup_pending = True
        elif o[0] == "POLL":
            a(f"buffer_load_dword v{vFl+1}, v{vFl}, {srd(sDbg)}, 0 offen sc1")
            pollpos = len(seq); seq.append("P")
        else:
            def wait():
                if len(seq) >= D:
                    a(f"s_waitcnt vmcnt({D-1})"); after_wait(D - 1)
            if len(seq) == D:
                common_setup(); flag_off(vFl); attn_consts()
            if o[0] == "L":
                _, v, s, so, off, dst = o
                a(f"s_add_u32 m0, {S_LB}, {dst - off}")
                wait()
                a(f"buffer_load_dwordx4 v{v}, {srd(s)}, {so} offen" + (f" offset:{off}" if off else "") + " lds")
                seq.append("L")
            else:
                wo_issue(o[1], wait); seq.append("W")
    while bi < len(bars):
        nout = max(n for n in range(len(seq) + 1) if landed_after_wait(n) >= bars[bi][0])
        a(f"s_waitcnt vmcnt({nout})"); after_wait(nout)
    assert polldone
    st()
    a(f"s_cmp_lt_u32 {S_W}, 6\ns_cbranch_scc1 L_attn")
    a("s_barrier")
    a(f"v_add_u32 v{vWoG+2}, {-16*1152 & 0xffffffff}, v{vWoG}")
    for n in range(wo_pre, 18):
        wo_issue(n, lambda: None)
        a(f"s_sub_u32 m0, m0, 2048\nbuffer_load_dwordx4 v{vWoG+2}, {srd(sWo)}, {S_A} offen lds")
    a("s_waitcnt vmcnt(0)")
    nsave = ns[0]
    st()
    a("s_barrier")
    a("s_branch L_fin")
    ns[0] = 1

    a(".p2align 6\nL_comp:")
    a(f"v_and_b32 v{t0}, 15, v{vL}\nv_lshrrev_b32 v{t1}, 4, v{vL}\nv_lshrrev_b32 v{t2}, 1, v{t0}\nv_xor_b32 v{t2}, v{t2}, v{t1}\nv_lshlrev_b32 v{t2}, 4, v{t2}")
    a(f"v_lshl_add_u32 v{vRA}, v{t0}, 7, v{t2}\nv_xor_b32 v{vRA+1}, 64, v{vRA}\nv_add_u32 v{vRA+2}, {2*SLOT}, v{vRA}\nv_add_u32 v{vRA+3}, {2*SLOT}, v{vRA+1}")
    a(f"v_bfe_u32 v{t0}, v{vL}, 2, 2\nv_lshl_add_u32 v{t2}, v{t1}, 3, v{t0}\nv_lshlrev_b32 v{t2}, 7, v{t2}\nv_bfe_u32 v{t0}, v{vL}, 3, 2\nv_xor_b32 v{t0}, {S_W}, v{t0}\nv_lshl_add_u32 v{t2}, v{t0}, 5, v{t2}")
    a(f"v_and_b32 v{t0}, 3, v{vL}\nv_lshl_add_u32 v{t2}, v{t0}, 3, v{t2}\nv_add_u32 v{vRB}, 12288, v{t2}\nv_add_u32 v{vRB+1}, {2*SLOT}, v{vRB}")
    a(f"s_lshl_b32 {T0}, {S_W}, 9\ns_add_u32 {T0}, {T0}, {XB}\nv_lshl_add_u32 v{vXw}, v{vL}, 3, {T0}")
    a("s_waitcnt lgkmcnt(0)")
    st()
    common_setup()
    def init_stores():
        if noinit: return
        a(f"s_mul_i32 {T0}, {S_J}, 18432\ns_lshl_b32 {T1}, {S_W}, 10\ns_add_u32 {T0}, {T0}, {T1}\nv_lshl_add_u32 v{FR+4}, v{vL}, 4, {T0}")
        for k in range(4): a(f"v_mov_b32 v{FR+k}, -1")
        for n in range(5):
            if n == 4: a(f"s_cmp_ge_u32 {S_W}, 2\ns_cbranch_scc1 L_ni")
            a(f"s_mov_b32 {T0}, {n*4096}\nbuffer_store_dwordx4 {vr(FR,4)}, v{FR+4}, {srd(sEx)}, {T0} offen sc1")
        a("L_ni:")
    if not initdelay: init_stores()
    attn_consts()
    if initdelay: init_stores()
    flag_off(vT + 8)
    a(f"v_mov_b32 v{vT+9}, {S_FLAGV}")
    def reads(s):
        c = s >> 1; sl = c % 4; F = FR + 36 * (s & 1)
        ra = vRA + 2 * (sl >> 1) + (s & 1); rb = vRB + (sl >> 1); o = (sl & 1) * SLOT
        A_ = lambda t: f"ds_read_b128 {vr(F+4*t,4)}, v{ra} offset:{o + t*2048}"
        B_ = lambda sec, h: f"ds_read_b64_tr_b16 {vr(F+24+4*sec+2*h,2)}, v{rb} offset:{o + sec*8192 + (s&1)*4096 + h*512}"
        return [B_(0,0), B_(0,1), A_(0), B_(1,0), B_(1,1), B_(2,0), B_(2,1)] + [A_(t) for t in range(1, 6)]
    def mfmas(s):
        F = FR + 36 * (s & 1); L = []
        for t in range(6):
            for sec in range(3):
                d = vr(ACC + 24 * sec + 4 * t, 4); x = vr(F + 4 * t, 4); w = vr(F + 24 + 4 * sec, 4)
                x, w = (w, x) if sec < 2 else (x, w)
                L.append(f"v_mfma_f32_16x16x32_bf16 {d}, {x}, {w}, {d if s else 0}")
        return L
    a.reset()
    a("s_waitcnt vmcnt(0) lgkmcnt(0)")
    stl("gemm")
    a("s_barrier")
    for r in reads(0): a.e(r)
    if not noatom: a(f"s_cmp_lg_u32 {S_W}, 0\ns_cbranch_scc1 L_noat\ns_mov_b64 exec, 1\nbuffer_atomic_add v{vT+9}, v{vT+8}, {srd(sDbg)}, 0 offen sc1\ns_mov_b64 exec, -1\nL_noat:")
    for s in range(18):
        M = mfmas(s)
        if s < 17:
            R = reads(s + 1)
            p0 = PB if (s + 1) in barsteps else 1
            per = -(-12 // (18 - p0))
            for k, m in enumerate(M):
                if k == p0 and (s + 1) in barsteps:
                    a.lgkm0(); stl("gemm"); a("s_barrier")
                if k >= p0:
                    for r in R[:per]:
                        if not noread: a.e(r)
                    R = R[per:]
                if not nomfma: a.e(m)
            assert not R
        else:
            def fin(k):
                t, sec = divmod(k, 3); d = ACC + 24 * sec + 4 * t
                a.e(f"v_cvt_pk_bf16_f32 v{d}, v{d}, v{d+1}\nv_cvt_pk_bf16_f32 v{d+1}, v{d+2}, v{d+3}")
                a.e(f"ds_write_b64 v{vXw}, {vr(d,2)} offset:{t*6144 + sec*2048}")
            for k, m in enumerate(M):
                a.e(m)
                if k >= 3: fin(k - 3)
            for k in range(15, 18): fin(k)
    a.lgkm0()
    st()
    a("L_attn:")
    dopad("attn")
    if stamp: a("s_waitcnt lgkmcnt(0)")
    a("s_barrier")
    a.reset()
    Q, K, KP, V = 48, 56, 64, 72
    QO = 88
    S = 104
    AB = 144
    RM = 154
    R_ = 158
    P = 170
    OL = 190
    OF = 48
    rd = lambda dst, base, sec, t: a.e(f"ds_read_b64 {vr(dst,2)}, v{base} offset:{sec*2048 + t*512}")
    a.e(f"v_mov_b32 v{R_}, {FL}\nds_read_b32 v{R_}, v{R_}")
    for t in (0, 3): rd(Q + 2 * t, vXs, 0, t); rd(K + 2 * t, vXs, 1, t); rd(KP + 2 * t, vXp, 1, t)
    for t in (1, 2): rd(Q + 2 * t, vXs, 0, t); rd(K + 2 * t, vXs, 1, t); rd(KP + 2 * t, vXp, 1, t)
    qL = lambda t, d: QO + 4 * t + d
    qR = lambda t, d: QO + 4 * t + 2 + d
    def maskq(t, side):
        for d in range(2):
            if side == "L": a.e(f"v_and_b32 v{qL(t,d)}, v{vM+2*t+d}, v{Q+2*t+d}")
            else: a.e(f"v_bfi_b32 v{qR(t,d)}, v{vM+2*t+d}, 0, v{Q+2*t+d}")
    def smfma(b):
        for (kk, c, o) in ((KP, vCp, 0), (K, vCs, 4)):
            d = vr(S + 8 * b + o, 4)
            if b == 0: a.e(f"v_mfma_f32_16x16x16_bf16 {d}, {vr(kk,2)}, {vr(QO,2)}, {vr(c,4)}")
            elif b == 4: a.e(f"v_mfma_f32_16x16x16_bf16 {d}, {vr(kk+6,2)}, {vr(QO+14,2)}, {vr(c,4)}")
            else: a.e(f"v_mfma_f32_16x16x32_bf16 {d}, {vr(kk+2*b-2,4)}, {vr(QO+4*b-2,4)}, {vr(c,4)}")
    def merge(b):
        s0 = S + 8 * b
        for d in range(2):
            a.e(f"v_max3_f32 v{AB+2*b+d}, v{s0+2*d}, v{s0+2*d+1}, v{s0+4+2*d}")
        for d in range(2):
            a.e(f"v_max_f32 v{AB+2*b+d}, v{AB+2*b+d}, v{s0+5+2*d}")
    a.e(f"v_readfirstlane_b32 {S_COL}, v{R_}")
    maskq(0, "L"); maskq(3, "R"); smfma(0); smfma(4)
    maskq(0, "R"); maskq(1, "L"); smfma(1)
    maskq(1, "R"); maskq(2, "L"); smfma(2)
    maskq(2, "R"); maskq(3, "L"); smfma(3)
    for t in range(4): rd(V + 4 * t, vXp, 2, t); rd(V + 4 * t + 2, vXs, 2, t)
    merge(0); merge(4)
    for r in (AB, AB + 1, AB + 8, AB + 9): a.e(f"v_min_u32 v{r}, -2, v{r}")
    def stores(L, tag):
        a(f"s_cmp_eq_u32 {S_COL}, 0\ns_cbranch_scc1 L_{tag}_s")
        for x in L: a(x)
        a(f"L_{tag}_b:")
        late.append((tag, L))
        for x in L: a.vq.append(set())
    late = []
    stores([f"buffer_store_dwordx2 {vr(AB,2)}, v{vP1s}, {srd(sEx)}, 0 offen", f"buffer_store_dwordx2 {vr(AB+8,2)}, v{vP1s}, {srd(sEx)}, 0 offen offset:512"], "p1")
    stl()
    merge(1); merge(2); merge(3)
    def red(op, heads, src, mid):
        if len(heads) == 2:
            x, y = src
            a.e(f"v_permlane16_swap_b32 v{x}, v{y}\n{op} v{x}, v{x}, v{y}\nv_mov_b32 v{y}, v{x}\nv_permlane32_swap_b32 v{x}, v{y}\n{op} v{x}, v{x}, v{y}")
            a.e(mid(x)); a.e(f"v_mov_b32 v{y}, v{x}\nv_permlane16_swap_b32 v{x}, v{y}")
        else:
            x, y, z, u = src
            a.e(f"v_mov_b32 v{u}, v{z}\nv_permlane16_swap_b32 v{x}, v{y}\nv_permlane16_swap_b32 v{z}, v{u}\n{op} v{x}, v{x}, v{y}\n{op} v{z}, v{z}, v{u}")
            a.e(f"v_permlane32_swap_b32 v{x}, v{z}\n{op} v{x}, v{x}, v{z}")
            a.e(mid(x)); a.e(f"v_mov_b32 v{z}, v{x}\nv_permlane32_swap_b32 v{x}, v{z}\nv_mov_b32 v{y}, v{x}\nv_permlane16_swap_b32 v{x}, v{y}")
    def softmax(heads):
        T = list(range(R_, R_ + 4))[:2 if len(heads) == 2 else 4]
        for k, b in enumerate(heads): a.e(f"v_max_f32 v{T[k]}, v{AB+2*b}, v{AB+2*b+1}")
        red("v_max_f32", heads, T, lambda x: f"v_mul_f32 v{x}, {T3}, v{x}")
        for k, b in enumerate(heads):
            for d in range(2): a.e(f"v_fma_f32 v{AB+2*b+d}, v{AB+2*b+d}, {T3}, -v{T[k]}")
        for k, b in enumerate(heads):
            for d in range(2): a.e(f"v_exp_f32 v{AB+2*b+d}, v{AB+2*b+d}")
        for k, b in enumerate(heads): a.e(f"v_add_f32 v{T[k]}, v{AB+2*b}, v{AB+2*b+1}")
        red("v_add_f32", heads, T, lambda x: f"v_rcp_f32 v{x}, v{x}")
        for k, b in enumerate(heads):
            for d in range(2): a.e(f"v_mul_f32 v{AB+2*b+d}, v{AB+2*b+d}, v{T[k]}")
        for k, b in enumerate(heads):
            for d in range(2): a.e(f"v_cvt_pk_bf16_f32 v{AB+2*b+d}, v{AB+2*b+d}, v{AB+2*b+d}")
        for k, b in enumerate(heads):
            for d in range(2): a.e(f"v_and_b32 v{P+4*b+d}, v{vMp+d}, v{AB+2*b+d}\nv_and_b32 v{P+4*b+2+d}, v{vMs+d}, v{AB+2*b+d}")
    def pv(t, side):
        b = t + side
        a.e(f"v_mfma_f32_16x16x32_bf16 {vr(OL+8*t+4*side,4)}, {vr(V+4*t,4)}, {vr(P+4*b,4)}, 0")
    def osel(t):
        o = OL + 8 * t
        for d in range(2):
            a.e(f"v_cvt_pk_bf16_f32 v{o+2*d}, v{o+2*d}, v{o+2*d+1}\nv_cvt_pk_bf16_f32 v{o+4+2*d}, v{o+4+2*d}, v{o+5+2*d}")
        for d in range(2):
            a.e(f"v_bfi_b32 v{o+2*d}, v{vM+2*t+d}, v{o+2*d}, v{o+4+2*d}\nv_min_u32 v{OF+2*t+d}, -2, v{o+2*d}")
    a(f"s_mov_b32 {T3}, {CEXP}")
    softmax([1, 2, 3])
    p1loads = f"buffer_load_dwordx2 {vr(RM,2)}, v{vP1l}, {srd(sEx)}, 0 offen sc1\nbuffer_load_dwordx2 {vr(RM+2,2)}, v{vP1r}, {srd(sEx)}, 0 offen sc1"
    a(p1loads)
    pv(0, 1); pv(1, 0); pv(1, 1); pv(2, 0); pv(2, 1); pv(3, 0)
    osel(1); osel(2)
    a.lgkm0()
    a(f"L_p1c:\ns_waitcnt vmcnt(0)\nv_max3_u32 v{R_+4}, v{RM}, v{RM+1}, v{RM+2}\nv_max_u32 v{R_+4}, v{R_+4}, v{RM+3}\nv_cmp_eq_u32 vcc, -1, v{R_+4}\ns_cbranch_vccnz L_p1r\nL_p1d:")
    a.reset()
    stl()
    for d in range(2): a.e(f"v_add_f32 v{AB+d}, v{AB+d}, v{RM+d}\nv_add_f32 v{AB+8+d}, v{AB+8+d}, v{RM+2+d}")
    softmax([0, 4])
    pv(0, 0); pv(3, 1)
    osel(0); osel(3)
    stores([f"buffer_store_dwordx4 {vr(OF,4)}, v{vO}, {srd(sEx)}, s{S_Q} offen", f"buffer_store_dwordx4 {vr(OF+4,4)}, v{vO}, {srd(sEx)}, s{S_Q} offen offset:1024"], "o")
    stl()
    OA = 120; BB = 136; NB = 7
    CK = 248
    a("s_barrier")
    poll = f"buffer_load_dword v{CK}, v{vPoll}, {srd(sEx)}, 0 offen sc1"
    a("L_p2:")
    a(poll)
    a.reset()
    def bread(n):
        L = []
        for t in range(4):
            for h in range(2):
                base = vWO + t if n < 9 else CK + 2 + t
                L.append(f"ds_read_b64_tr_b16 {vr(BB+16*(n%NB)+4*t+2*h,2)}, v{base} offset:{(n%9)*4096 + h*2048}")
        return L
    def m2(n):
        return [f"v_mfma_f32_16x16x32_bf16 {vr(OA+4*t,4)}, {vr(BB+16*(n%NB)+4*t,4)}, {vr(OF+4*n,4)}, {vr(OA+4*t,4) if n else 0}" for t in range(4)]
    for t in range(4): a.e(f"v_add_u32 v{CK+2+t}, {9*4096}, v{vWO+t}")
    for n in range(npre):
        for r in bread(n): a.e(r)
    nxt = npre
    for n in range(2):
        for m in m2(n): a.e(m)
    a.lgkm0()
    a(f"L_p2c:\ns_waitcnt vmcnt(0)\nv_cmp_eq_u32 vcc, -1, v{CK}\ns_cbranch_vccnz L_p2r\nL_p2d:")
    stl()
    for n in range(2, 18):
        a.e(f"buffer_load_dwordx4 {vr(OF+4*n,4)}, v{vO}, {srd(sEx)}, s{S_Q+(n>>1)} offen" + (" offset:1024" if n & 1 else "") + " sc1")
    while nxt < min(18, 2 + NB):
        for r in bread(nxt): a.e(r)
        nxt += 1
    a.e(f"v_mov_b32 v{CK}, 0")
    for n in range(2, 18):
        M = m2(n)
        R = bread(nxt) if (nxt < 18 and n > 2) else []
        if R: nxt += 1
        o = OF + 4 * n
        for k, m in enumerate(M):
            a.e(m)
            for r in R[2 * k:2 * k + 2]: a.e(r)
            if k < 2: a.e(f"v_max3_u32 v{CK}, v{CK}, v{o+2*k}, v{o+2*k+1}")
    assert nxt == 18
    a.e(f"v_cmp_eq_u32 vcc, -1, v{CK}")
    a("s_cbranch_vccnz L_p2x\nL_p2e:")
    stl()
    for t in range(1, 4): a.e(f"v_xor_b32 v{CK+t}, {32*t}, v{vTw}")
    for t in range(4):
        o = OA + 4 * t
        a.e(f"v_cvt_pk_bf16_f32 v{o}, v{o}, v{o+1}\nv_cvt_pk_bf16_f32 v{o+1}, v{o+2}, v{o+3}\nds_write_b64 v{CK+t if t else vTw}, {vr(o,2)}")
    for h in range(2): a.e(f"ds_read_b128 {vr(BB+4*h,4)}, v{vTr} offset:{h*1024}")
    for h in range(2): a.e(f"buffer_store_dwordx4 {vr(BB+4*h,4)}, v{vSt+h}, {srd(sOut)}, 0 offen {out_mod}")
    if stamp:
        st("post"); a("s_waitcnt vmcnt(0)"); st("post")
    a("L_fin:")
    dopad("end")
    if stamp:
        a(f"s_waitcnt lgkmcnt(0)\ns_lshl_b32 {T0}, s2, 3\ns_add_u32 {T0}, {T0}, {S_W}\ns_lshl_b32 {T0}, {T0}, 7\ns_add_u32 {T0}, {T0}, {STAMP_OFF}")
        a(f"s_add_u32 s46, s{S_WS}, {T0}\ns_addc_u32 s47, s{S_WS+1}, 0\nv_mov_b32 v1, 0")
        for k in range(15): a(f"v_mov_b32 v2, s{S_ST+2*k}\nglobal_store_dword v1, v2, s[46:47] offset:{4*k}")
    a("L_end:\ns_endpgm")
    for tag, L in late:
        a(f"L_{tag}_s:")
        for x in L: a(x + " sc1")
        a(f"s_branch L_{tag}_b")
    a("L_p1r:\n" + SPIN + "L_p1d\n" + p1loads + "\ns_branch L_p1c")
    a("L_p2r:\n" + SPIN + "L_p2d\n" + poll + "\ns_branch L_p2c")
    a("L_p2x:\n" + SPIN + "L_p2e\ns_branch L_p2")
    lines, tot = hz.fix(a.l)
    body = "\n".join(lines) + "\n.fill 4096, 4, 0xbf800000\n"
    return kernel_file(body, 256, 512, 163840, vgpr=256, sgpr=96)

if __name__ == "__main__":
    open("k1.s", "w").write(gen())
    open("k1s.s", "w").write(gen(stamp=True))
STAMPSETS = [("comp", slice(0, 4), 14), ("ld45", slice(4, 6), 14), ("ld67", slice(6, 8), 15)]
def workers(w): return w[:, :216], w[:, 216:]
```

```python
import re
TRANS = ("v_exp_f32", "v_log_f32", "v_rcp_f32", "v_rsq_f32", "v_sqrt_f32", "v_sin_f32", "v_cos_f32")
def regs(op):
    op = op.strip()
    op = re.sub(r"^-|^abs\(|\)$|^\|", "", op).strip("|")
    m = re.fullmatch(r"([vsa])\[(\d+):(\d+)\]", op)
    if m: return {f"{m.group(1)}{i}" for i in range(int(m.group(2)), int(m.group(3)) + 1)}
    m = re.fullmatch(r"([vsa])(\d+)", op)
    if m: return {op}
    if op == "vcc": return {"vcc"}
    if op == "exec": return {"exec"}
    if op == "m0": return {"m0"}
    return set()
class I:
    def __init__(self, line):
        self.line = line
        s = line.split(";")[0].strip()
        self.label = s.endswith(":")
        self.directive = s.startswith(".")
        self.mn = ""; self.w = set(); self.r = set(); self.cls = "none"; self.ws = 0
        self.a = self.b = self.c = set(); self.data = set()
        if not s or self.label or self.directive: return
        s = re.sub(r"\s+(op_sel|op_sel_hi|neg_lo|neg_hi|quad_perm):\[[^\]]*\]", lambda m: " quad_perm" if m.group(1) == "quad_perm" else "", s)
        p = s.split(None, 1)
        mn = self.mn = re.sub(r"_e(32|64)$", "", p[0])
        ops = [x.strip() for x in p[1].split(",")] if len(p) > 1 else []
        if ops:
            last = ops[-1].split()
            ops[-1] = last[0]; mods = last[1:]
        else: mods = []
        self.mods = mods
        self.ws = 1
        R = [regs(o) for o in ops]
        U = lambda L: set().union(*L) if L else set()
        if mn == "s_nop":
            self.ws = int(ops[0], 0) + 1; self.cls = "nop"
        elif mn.startswith("v_mfma"):
            self.cls = "mfma"; self.w = R[0]; self.a, self.b, self.c = R[1], R[2], R[3]; self.r = U(R[1:])
            self.passes = 8 if "32x32" in mn else 4
        elif mn.startswith("v_permlane") and "swap" in mn:
            self.cls = "valu"; self.w = U(R); self.r = U(R)
        elif mn.startswith("v_"):
            self.cls = "valu"; self.w = set(R[0]); self.r = U(R[1:])
            if "_co_" in mn: self.w |= R[1]; self.r = U(R[2:])
            if mn.startswith(("v_fmac", "v_pk_fmac", "v_writelane", "v_dot2c")): self.r |= R[0]
            if mn.startswith("v_cmpx"): self.w |= {"exec"}
            self.dpp = any(m.startswith(("row_", "quad_perm", "wave_")) for m in mods)
        elif mn.startswith("ds_"):
            self.cls = "ds"
            if "read" in mn or "permute" in mn or "swizzle" in mn: self.w = R[0]; self.r = U(R[1:])
            else: self.r = U(R)
            if "addtid" in mn: self.r |= {"m0"}
        elif mn.startswith("buffer_wbl2"): self.cls = "other"
        elif mn.startswith(("buffer_", "global_")):
            self.cls = "vmem"
            if "lds" in mods or "_lds_" in mn: self.r = U(R) | {"m0"}
            elif "load" in mn: self.w = R[0]; self.r = U(R[1:])
            else:
                self.r = U(R)
                if mn.endswith(("x3", "x4")): self.data = R[0] if mn.startswith("buffer") else R[1]
        elif mn.startswith("s_"):
            self.cls = "salu"
            if mn.startswith(("s_cmp", "s_cbranch", "s_branch", "s_waitcnt", "s_barrier", "s_sleep", "s_setprio", "s_endpgm", "s_bitcmp")):
                self.r = U(R)
            else:
                self.w = set(R[0]) if R else set(); self.r = U(R[1:])
                if mn.startswith("s_addk"): self.r |= self.w
                if "saveexec" in mn: self.w |= {"exec"}
            if mn.startswith(("s_cmp", "s_bitcmp", "s_add", "s_sub", "s_and", "s_or", "s_xor", "s_lshl", "s_lshr", "s_not", "s_min", "s_max", "s_nor", "s_bfe")): self.w |= {"SCC"}
            if mn.startswith(("s_cselect", "s_addc", "s_subb", "s_cbranch_scc", "s_cmov")): self.r |= {"SCC"}
_I0 = I.__init__
def _I1(self, line):
    _I0(self, line)
    if ";" in line:
        for k, t in re.findall(r"([rw])=(\w+)", line.split(";", 1)[1]):
            if k == "r": self.r = set(self.r) | {"T_" + t}
            else: self.w = set(self.w) | {"T_" + t}
I.__init__ = _I1
def need(p, c):
    n = 0
    isv = lambda S: {x for x in S if x[0] in "va" and x != "vcc"}
    iss = lambda S: {x for x in S if x[0] == "s" or x == "vcc"}
    if p.cls == "valu":
        if c.cls == "mfma" and isv(p.w) & c.r: n = max(n, 2)
        if c.cls == "mfma" and "exec" in p.w: n = max(n, 4)
        if c.cls == "valu":
            if c.mn.startswith("v_permlane") and isv(p.w) & c.r: n = max(n, 2)
            if getattr(c, "dpp", False) and isv(p.w) & c.r: n = max(n, 2)
            if c.mn.startswith(("v_readfirstlane", "v_readlane")) and isv(p.w) & c.r: n = max(n, 1)
            if p.mn in TRANS and isv(p.w) & c.r: n = max(n, 1)
            if iss(p.w) & c.r: n = max(n, 4 if c.mn.startswith(("v_readlane", "v_writelane")) else 2)
        if c.cls == "vmem" and iss(p.w) & c.r: n = max(n, 5)
        if c.cls == "salu" and iss(p.w) & c.r: n = max(n, 1)
    if p.cls == "mfma":
        t = {4: (6, 8, 3), 8: (10, 12, 7)}[p.passes]
        if c.cls == "mfma":
            if p.w & c.c and (p.w != c.c or p.passes != c.passes): n = max(n, t[0])
            if p.w & (c.a | c.b): n = max(n, t[1])
            if p.w & c.w and not (p.w & c.c): n = max(n, t[0])
        elif c.cls in ("valu", "ds", "vmem"):
            if p.w & (c.r | c.w): n = max(n, t[1])
            if c.cls == "valu" and p.c & c.w: n = max(n, t[2])
    if p.cls == "salu" and "m0" in p.w and "m0" in c.r and c.cls in ("vmem", "ds"): n = max(n, 1)
    if p.cls == "vmem" and p.data & c.w: n = max(n, 2)
    return n
def fix(lines, verbose=False):
    out = []
    tot = 0
    for line in lines:
        c = I(line)
        if c.ws:
            d = 0; req = 0
            for p in reversed(out):
                if p.mn in ("s_branch", "s_endpgm", "s_setpc_b64"): break
                if d >= 13: break
                if p.ws:
                    req = max(req, need(p, c) - d)
                    d += p.ws
            if req > 0:
                tot += req
                if verbose: print("nop", req, "before", line.strip())
                out.append(I(f"    s_nop {req-1}"))
        out.append(c)
    return [x.line for x in out], tot

def sched(lines, boost=None, lds_lat=22, vm_lat=70, sc=1):
    N = [I(x) for x in lines]
    n = len(N)
    succ = [[] for _ in N]; npred = [0] * n; hzd = [[] for _ in N]; eidx = [0] * n; idx = 0
    isw = lambda x: x.cls == "ds" and "write" in x.mn
    for j in range(n):
        for i in range(j):
            p, c = N[i], N[j]
            raw = p.w & c.r; dep = raw or (p.w & c.w) or (p.r & c.w)
            mem = (p.cls == "vmem" and c.cls == "vmem") or (p.cls == "ds" and c.cls == "ds" and (isw(p) or isw(c)))
            if not (dep or mem): continue
            lat = 1
            if dep: lat = max(lat, need(p, c) + 1)
            if (raw or (p.w & c.w)) and p.cls == "ds": lat = lds_lat
            if (raw or (p.w & c.w)) and p.cls == "vmem": lat = vm_lat
            if raw and p.cls == "mfma" and c.cls == "mfma": lat = max(lat, 4)
            if raw and p.mn in TRANS: lat = max(lat, 3)
            if raw and p.mn.startswith("v_permlane"): lat = max(lat, sc)
            succ[i].append((j, lat)); npred[j] += 1
            if dep and need(p, c): hzd[i].append((j, need(p, c) + 1))
    cost = lambda x: 2 if (x.cls == "mfma" or x.mn in TRANS) else (sc if x.mn.startswith("v_permlane") else 1)
    pr = [0] * n
    for i in reversed(range(n)):
        pr[i] = max([cost(N[i])] + [l + pr[j] for j, l in succ[i]])
        for k, v in (boost or {}).items():
            if k in lines[i]: pr[i] = max(pr[i], v)
    est = [0] * n; ready = [i for i in range(n) if npred[i] == 0]
    t = 0; mf = 0; out = []
    while ready:
        e = lambda i: max(est[i], mf if N[i].cls == "mfma" else 0, t + eidx[i] - idx)
        av = [i for i in ready if e(i) <= t]
        if av: i = max(av, key=lambda i: (pr[i], -i))
        else:
            i = min(ready, key=lambda i: (e(i), -pr[i])); t = e(i)
        idx = max(idx, eidx[i])
        for j, l in hzd[i]: eidx[j] = max(eidx[j], idx + l)
        idx += 1
        ready.remove(i); out.append(lines[i])
        for j, l in succ[i]:
            est[j] = max(est[j], t + l); npred[j] -= 1
            if npred[j] == 0: ready.append(j)
        if N[i].cls == "mfma": mf = t + 4
        t += cost(N[i])
    assert len(out) == n
    return out, t
```

```python
import sys, math, struct
from asmlib import *
import hz
from gen1 import W, vr

SLOT = 36864
WOB = 89088
XB = 0
R0B = SLOT
SPB = 2 * SLOT
slot_of = lambda c: (c + 2) % 3
FL = 163840 - 256
RSZ = 12288
FOFF = 9 * RSZ
GSZ = FOFF + 1024
STAMP_OFF = 128 << 20
CEXP = struct.unpack("<I", struct.pack("<f", 18 ** -0.5 * math.log2(math.e)))[0]

sX, sWq, sWo, sOut, sEx = 4, 8, 12, 16, 20
sK2 = 24
S_XCD, S_SLOT, S_RGL, S_J, S_W, S_GI, S_ROW0 = "s28", "s29", "s30", "s31", "s32", "s33", "s34"
S_C, S_A, S_B, S_LB, S_COL, S_SP = "s35", "s36", "s37", "s38", "s39", "s40"
H0 = "s41"
T0, T1, T2, T3 = "s42", "s43", "s44", "s45"
sCE = 46
S_Q = 48
S_M1 = "s57"; S_FV = "s3"
sM = 58
sD = 64
SLOWOFF = 4 << 20
SLOW2 = 8 << 20
S_DM = 's62'
vOA = 25; vAo = 250; vDs, vDp = 253, 254
S_ST = 74
NST = 14
def srd(b): return f"s[{b}:{b+3}]"
def sp(b): return f"s[{b}:{b+1}]"
SPIN = f"s_add_u32 {S_SP}, {S_SP}, 1\ns_cmp_ge_u32 {S_SP}, 0x40000\ns_cbranch_scc1 "

vL = 0; vOne = 1
vCs, vCp = 2, 6
vMe = 10
vM, vMV = 13, 21
vXs, vXp, vP1a, vP1b, vP1l, vP1r, vO, vFs, vFp = 25, 26, 27, 28, 29, 30, 31, 32, 33
vWO = 34
vTw, vTr, vSt = 38, 39, 40
vR0, vR1, vFl, vOw = 43, 44, 45, 51
vT = 46
vA, vB, vWoG = 240, 243, 245
vRA, vRB, vXw = 52, 56, 58
ACC = 60; FR = 132

def lanemask(f):
    m = 0
    for l in range(64):
        if f(l): m |= 1 << l
    return m

def gen0(cpad=None, npf=10, cw2=1, early=0, xk=2, xpos2=46, noack=0, aout=1, a4=0, pdep=1, pex=2, psl=0, fex=0, fl2=0, dex=1, no54=1, p1st=1, tramp=0, tpad=0, wrot=1, ntall=0, late67=1, dpos=(40, 51), wb=None, widev=1, cyield=None, cback=0, fafirst=1, lup=None, dbgpause=None, dbgpre=0, oord=1, wsteps=(2, 2, 2), epts=(4, 16), cwk=6, otouch=0, lal=1, D=12, PB=10, fine=(0,), cx=1, help="HoE", stamp=False, sset="post", clk=False, force_sc1=False, out_mod="nt", st_mod="nt",
        swap=1, prio=1, hs=(32, 44, 66, 74), pre1=0, pre2=10, cks=(6, 10, 14, 18, 22, 26, 30, 34, 38, 42, 46, 50, 54), ckpos=(21,), ppos=(12, 21, 37), sbar=4, mk=1, nochk=0, nowar=0, border=0, dso=0, PB2=12, cw=1, rc1=1, hsw=1, hpos=None, lat=((1,3,3,2),(2,3,3,1),(1,2,3,3)), LA=6, d1=4, d2=2, reuse=2, warf=24, warl=43, bev=2, owa=0, mlead=1, WL=4, stampL=0, faC=10, faL=14, lk1=1, preb=6, opos=48, wide=1, LAG=3, vlC=70, vlL=25, pbC=-1, pbL=60, LEAD=1, wo_pre=4, D3=7, touch=0, wotouch=2, fbat=-1, cj=0, etouch=0, lprio=0, Db=9, secmaj=0, hearly=0, spread=1, nomfma=False, noread=False):
    a = W()
    ns = [0]
    def st(k="any"):
        if stamp and (k == sset or (k == "any" and (sset != "e2e" or ns[0] == 0))) and ns[0] < NST:
            a(("s_memtime" if clk else "s_memrealtime") + f" s[{S_ST+2*ns[0]}:{S_ST+2*ns[0]+1}]")
            ns[0] += 1
            if sset == "e2e":
                a(f"s_memtime s[{S_ST+2*ns[0]}:{S_ST+2*ns[0]+1}]"); ns[0] += 1
    def stl(k="post"):
        if stamp and k == sset:
            st()
    t0, t1, t2, t3, t4 = range(vT, vT + 5)
    st()
    a(f"s_load_dwordx2 {sp(sX)}, s[0:1], 0\ns_load_dwordx2 {sp(sWq)}, s[0:1], 8")
    assert swap and hsw and not cj
    a(f"s_getpc_b64 {sp(sCE)}\ns_lshr_b32 {S_SLOT}, s2, 3\ns_and_b32 {T0}, {S_SLOT}, 15\ns_mul_i32 {T0}, {T0}, {npf}")
    a(f"v_subrev_u32 v3, 256, v0\nv_add_lshl_u32 v2, v3, {T0}, 7\nv_cmp_gt_u32 vcc, {npf}, v3")
    a(f"v_readfirstlane_b32 {S_LB}, v0\ns_and_saveexec_b64 {sp(sM)}, vcc\ns_cbranch_execz L_nopf")
    a(f"global_load_dword v208, v2, {sp(sCE)}\nL_nopf:\ns_mov_b64 exec, -1")
    a(f"s_load_dwordx4 s[{sWo}:{sWo+3}], s[0:1], 16\ns_load_dwordx4 s[{sK2}:{sK2+3}], s[0:1], 32")
    a(f"s_lshr_b32 {S_W}, {S_LB}, 6\ns_and_b32 {S_XCD}, s2, 7")
    a(f"s_mov_b32 s{sX+2}, 2359296\ns_mov_b32 s{sX+3}, 0x20000\ns_mov_b32 s{sWq+2}, 1990656\ns_mov_b32 s{sWq+3}, s{sX+3}")
    a(f"s_cmp_ge_u32 {S_SLOT}, 27\ns_cbranch_scc1 L_help")
    a(f"s_mul_i32 {S_RGL}, {S_SLOT}, 57\ns_lshr_b32 {S_RGL}, {S_RGL}, 9\ns_mul_i32 {T0}, {S_RGL}, 9\ns_sub_u32 {S_J}, {S_SLOT}, {T0}")
    a(f"s_lshr_b32 {S_GI}, {S_XCD}, 1\ns_mul_i32 {S_GI}, {S_GI}, 3\ns_add_u32 {S_GI}, {S_GI}, {S_RGL}")
    a(f"s_mul_i32 {S_ROW0}, {S_GI}, 170\ns_and_b32 {T0}, {S_XCD}, 1\ns_add_u32 {S_ROW0}, {S_ROW0}, {T0}")
    if swap: a(f"s_xor_b32 {S_W}, {S_W}, 4")
    if tramp: a(f"s_cbranch_scc0 L_tramp")
    a(f"s_cmp_lt_u32 {S_W}, 4\ns_cbranch_scc1 L_comp")

    G67 = []
    def setup_groups(role):
        G = []
        g = G.append
        g(f"s_mov_b64 {sp(sOut)}, {sp(sWo+2)}\ns_mov_b32 s{sWo+2}, 663552\ns_mov_b32 s{sWo+3}, 0x20000\ns_mov_b32 s{sOut+2}, 2359296\ns_mov_b32 s{sOut+3}, 0x20000")
        g(f"s_mul_i32 {T0}, {S_XCD}, 3\ns_add_u32 {T0}, {T0}, {S_RGL}\ns_mul_i32 {T0}, {T0}, {GSZ}\ns_add_u32 s{sEx}, s{sK2+2}, {T0}\ns_addc_u32 s{sEx+1}, s{sK2+3}, 0")
        g(f"s_mov_b32 s{sEx+2}, {GSZ}\ns_mov_b32 s{sEx+3}, 0x20000\ns_mov_b32 {S_SP}, 0\ns_mov_b32 s{sCE}, {CEXP}\ns_mov_b32 s{sCE+1}, {CEXP}")
        g(f"s_mov_b64 {sp(sD)}, {sp(sEx)}\ns_mov_b32 s{sD+2}, {FOFF}\ns_mov_b32 s{sD+3}, 0x20000")
        g(f"s_mul_i32 s{S_Q}, {S_J}, {RSZ}\ns_lshl_b32 {S_M1}, 5, {S_J}\ns_bfe_u32 {S_M1}, {S_M1}, 0x90001")
        g(f"s_getreg_b32 {T0}, hwreg(HW_REG_XCC_ID, 0, 4)\ns_mul_i32 {S_FV}, {T0}, {T0}\ns_lshl_b32 {S_FV}, {S_FV}, 8\ns_add_u32 {S_FV}, {S_FV}, {T0}\ns_lshl_b32 {S_FV}, {S_FV}, 8\ns_add_u32 {S_FV}, {S_FV}, 1")
        if role == "L":
            g(f"v_lshlrev_b32 v{vWoG+4}, 20, v{vL}\nv_add_u32 v{vWoG+4}, {FOFF+768}, v{vWoG+4}")
            for q in range(1, 9):
                g(f"s_add_u32 s{S_Q+q}, s{S_Q+q-1}, {RSZ}\ns_cmp_eq_u32 s{S_Q+q}, {FOFF}\ns_cselect_b32 s{S_Q+q}, 0, s{S_Q+q}")
        g(f"v_mov_b32 v{t0}, 0xff800000\nv_mov_b32 v{t1}, 0xffff\nv_mov_b32 v{vOne}, 1\nv_mov_b32 v{vCp}, 0\nv_mov_b32 v{vCp+2}, 0")
        setv = lambda m: f"s_mov_b32 vcc_lo, {m & 0xffffffff}\ns_mov_b32 vcc_hi, {m >> 32}\n"
        for d in range(2):
            le = lambda l: 2 * (l >> 4) + d <= ((l & 15) >> 1)
            e = lambda l: l & 1
            for k, (f, c) in enumerate(((lambda l: le(l) != e(l), vCs + 2 * d), (lambda l: le(l) and e(l), vCs + 2 * d + 1), (lambda l: not le(l) and not e(l), vCp + 2 * d + 1))):
                x = setv(lanemask(f))
                if k == 2: x += f"s_cmp_eq_u32 {S_W}, 0\ns_cselect_b64 vcc, 0, vcc\n"
                x += f"v_cndmask_b32 v{c}, v{t0}, 0, vcc\n"
                if d == 0: x += f"v_cndmask_b32 v{vMe+k}, 0, v{t1}, vcc"
                else: x += f"v_cndmask_b32 v{t2}, 0, v{t1}, vcc\nv_lshl_or_b32 v{vMe+k}, v{t2}, 16, v{vMe+k}"
                g(x)
        g(f"v_lshrrev_b32 v{t0}, 4, v{vL}\nv_lshlrev_b32 v{t1}, 1, v{t0}\nv_bfe_u32 v{t2}, v{vL}, 1, 3\ns_mul_i32 {T0}, {S_J}, {4*57}\ns_lshr_b32 {T0}, {T0}, 9\ns_mul_i32 {T0}, {T0}, 9\ns_lshl_b32 {T1}, {S_J}, 2\ns_sub_u32 {T1}, {T1}, {T0}")
        for t in range(4):
            g(f"v_subrev_u32 v{t3}, {T1}, v{t1}\nv_ashrrev_i32 v{vM+2*t}, 31, v{t3}\nv_add_u32 v{t3}, 1, v{t3}\nv_ashrrev_i32 v{vM+2*t+1}, 31, v{t3}")
            g(f"v_subrev_u32 v{t3}, {T1}, v{t2}\nv_ashrrev_i32 v{vMV+t}, 31, v{t3}" + (f"\ns_add_u32 {T1}, {T1}, 1\ns_cmp_eq_u32 {T1}, 9\ns_cselect_b32 {T1}, 0, {T1}" if t < 3 else ""))
        g(f"s_mul_i32 {T0}, {S_W}, 6144\ns_add_u32 {T0}, {T0}, {XB}\nv_lshl_add_u32 v{vXs}, v{vL}, 3, {T0}\ns_sub_u32 {T0}, {T0}, 6144\ns_max_i32 {T0}, {T0}, {XB}\nv_lshl_add_u32 v{vXp}, v{vL}, 3, {T0}")
        g(f"s_lshl_b32 {T2}, {S_W}, 11\nv_lshl_add_u32 v{vO}, v{vL}, 4, {T2}\ns_add_u32 {T0}, {T2}, s{S_Q}\ns_add_u32 {T0}, {T0}, 1024")
        g(f"s_sub_u32 {T1}, {T0}, {RSZ-512}\ns_cmp_eq_u32 {S_J}, 0\ns_cselect_b32 {T1}, 0x40000000, {T1}\ns_cselect_b32 {T3}, 0x40000000, {T0}\nv_lshl_add_u32 v{vP1a}, v{vL}, 3, {T1}\nv_lshl_add_u32 v{vP1l}, v{vL}, 3, {T3}")
        g(f"s_add_u32 {T1}, {T0}, {RSZ}\ns_add_u32 {T3}, {T0}, 512\ns_cmp_eq_u32 {S_J}, 8\ns_cselect_b32 {T1}, 0x40000000, {T1}\ns_cselect_b32 {T3}, 0x40000000, {T3}\nv_lshl_add_u32 v{vP1b}, v{vL}, 3, {T1}\nv_lshl_add_u32 v{vP1r}, v{vL}, 3, {T3}")
        if not fl2: g(f"s_lshl_b32 {T0}, {S_W}, 7")
        elif role == "C": g(f"s_lshr_b32 {T0}, {S_W}, 1\ns_lshl_b32 {T0}, {T0}, 7\ns_and_b32 {T1}, {S_W}, 1\ns_mul_i32 {T1}, {T1}, 36\ns_add_u32 {T0}, {T0}, {T1}")
        else: g(f"s_and_b32 {T0}, {S_W}, 1\ns_lshl_b32 {T0}, {T0}, 7\ns_add_u32 {T0}, {T0}, 72")
        g(f"s_add_u32 {T0}, {T0}, {FOFF}\nv_and_b32 v{t1}, 15, v{vL}\nv_lshl_add_u32 v{vFp}, v{t1}, 2, {T0}\ns_lshl_b32 {T1}, {S_J}, 2\ns_add_u32 {T0}, {T0}, {T1}\nv_lshl_add_u32 v{vFs}, v{vL}, 20, {T0}")
        if role == "C":
            g(f"s_lshr_b32 {T2}, {S_W}, 1\ns_and_b32 {T3}, {S_W}, 1\ns_lshl_b32 {T0}, {T3}, 1")
            g(f"v_lshrrev_b32 v{t2}, 2, v{vL}\nv_lshlrev_b32 v{t3}, 7, v{t2}\nv_bfe_u32 v{t4}, v{vL}, 3, 2\nv_xor_b32 v{t4}, {T0}, v{t4}\nv_lshl_add_u32 v{t3}, v{t4}, 5, v{t3}")
            g(f"v_and_b32 v{t4}, 3, v{vL}\nv_lshl_add_u32 v{t3}, v{t4}, 3, v{t3}\nv_add_u32 v{vWO}, {WOB}, v{t3}\nv_xor_b32 v{vWO+1}, 32, v{vWO}\nv_add_u32 v{vWO+2}, 32768, v{vWO}\nv_add_u32 v{vWO+3}, 32768, v{vWO+1}")
            g(f"s_mul_i32 {T0}, {T2}, 18432\ns_add_u32 {T0}, {T0}, {R0B}\nv_lshl_add_u32 v{vR0}, v{vL}, 4, {T0}\ns_lshl_b32 {T1}, {T2}, 10\ns_add_u32 {T1}, {T1}, {XB}\nv_lshl_add_u32 v{vR1}, v{vL}, 4, {T1}")
            if not dso:
                g(f"s_mul_i32 {T1}, {T3}, 3072\ns_add_u32 {T0}, {T0}, {T1}\ns_add_u32 {T0}, {T0}, {(0 if reuse else WOB) + 11264}" if reuse != 2 else f"s_lshl_b32 {T0}, {S_W}, 10\ns_add_u32 {T0}, {T0}, {WOB + 5*8192 + 2048}")
                g(f"v_lshrrev_b32 v{t3}, 4, v{vL}\nv_xor_b32 v{t3}, v{t3}, v{vL}\nv_and_b32 v{t3}, 6, v{t3}\nv_and_b32 v{t0}, 1, v{t0}\nv_or_b32 v{t3}, v{t3}, v{t0}\nv_lshl_add_u32 v{t3}, v{t3}, 3, {T0}\nv_lshl_add_u32 v{vTw}, v{t1}, 6, v{t3}")
                g(f"v_lshrrev_b32 v{t3}, 3, v{vL}\nv_xor_b32 v{t0}, v{t3}, v{vL}\nv_and_b32 v{t0}, 3, v{t0}\nv_lshl_add_u32 v{t0}, v{t0}, 4, {T0}\nv_lshl_add_u32 v{vTr}, v{t2}, 6, v{t0}")
                g(f"v_and_b32 v{t0}, 4, v{vL}\nv_lshl_add_u32 v{t3}, v{t0}, 1, v{t3}\ns_lshl_b32 {T0}, {S_J}, 7\ns_lshl_b32 {T1}, {T3}, 6\ns_add_u32 {T0}, {T0}, {T1}\nv_lshl_add_u32 v{t4}, v{t4}, 4, {T0}")
            else:
                g(f"v_bfe_u32 v{t3}, v{vL}, 1, 3\nv_and_b32 v{t0}, 1, v{vL}\nv_lshl_add_u32 v{t3}, v{t0}, 3, v{t3}\ns_lshl_b32 {T0}, {S_J}, 7\ns_lshl_b32 {T1}, {T3}, 6\ns_add_u32 {T0}, {T0}, {T1}")
                g(f"v_lshrrev_b32 v{t4}, 5, v{vL}\nv_lshl_add_u32 v{t4}, v{t4}, 4, {T0}\nv_and_b32 v{t0}, 16, v{vL}\nv_lshl_add_u32 v{t4}, v{t0}, 1, v{t4}")
            g(f"s_cmp_eq_u32 {S_GI}, 0\ns_cselect_b32 {T0}, 0, 7\ns_sub_u32 {T1}, 92, {T0}\nv_bfrev_b32 v{t2}, 1")
            for k in range(3):
                g((f"s_lshl_b32 {T3}, {T2}, 5", f"s_add_u32 {T3}, {T3}, 16", f"s_lshl_b32 {T3}, {T2}, 4\ns_add_u32 {T3}, {T3}, 64")[k] +
                  f"\nv_add_u32 v{t0}, {T3}, v{t3}\nv_subrev_u32 v{t1}, {T0}, v{t0}\nv_cmp_gt_u32 vcc, {T1}, v{t1}\nv_lshl_add_u32 v{t0}, v{t0}, 1, {S_ROW0}\nv_mul_u32_u24 v{t0}, 1152, v{t0}\nv_add_u32 v{t0}, v{t0}, v{t4}\nv_cndmask_b32 v{vSt+k}, v{t2}, v{t0}, vcc")
        else:
            g(f"s_and_b32 {T2}, {S_W}, 1")
            if late67: g = G67.append
            if not fl2:
                g(f"s_and_b32 {T2}, {S_W}, 1\nv_mul_u32_u24 v{t0}, 57, v{vL}\nv_lshrrev_b32 v{t0}, 9, v{t0}\nv_mul_u32_u24 v{t1}, 9, v{t0}\nv_sub_u32 v{t1}, v{vL}, v{t1}")
                g(f"v_mul_u32_u24 v{t2}, 11, v{t0}\nv_lshrrev_b32 v{t2}, 5, v{t2}\nv_mul_u32_u24 v{t3}, 3, v{t2}\nv_sub_u32 v{t3}, v{t0}, v{t3}")
                g(f"v_cmp_gt_u32 vcc, 54, v{vL}\nv_mad_u32_u24 v{t2}, v{t2}, 9, v{t1}\nv_mov_b32 v{t0}, {S_J}\nv_cndmask_b32 v{t3}, v{t1}, v{t3}, vcc\nv_cndmask_b32 v{t2}, v{t0}, v{t2}, vcc\nv_cndmask_b32 v{t0}, 1, 0, vcc\nv_xor_b32 v{t0}, {T2}, v{t0}")
                g(f"v_cmp_eq_u32 vcc, 2, v{t3}\nv_lshl_add_u32 v{t1}, v{t0}, 1, v{t3}\nv_add_u32 v{t0}, 4, v{t0}\nv_cndmask_b32 v{t1}, v{t1}, v{t0}, vcc\nv_lshlrev_b32 v{t1}, 7, v{t1}\nv_lshl_add_u32 v{t1}, v{t2}, 2, v{t1}")
            else:
                assert no54
                g(f"s_and_b32 {T2}, {S_W}, 1\nv_cmp_lt_u32 vcc, 26, v{vL}\ns_lshl_b32 {T0}, {T2}, 7\ns_add_u32 {T0}, {T0}, {256-36}\nv_cndmask_b32 v{t1}, 0, 37, vcc\nv_add_lshl_u32 v{t1}, v{t1}, v{vL}, 2\nv_add_u32 v{t1}, {T0}, v{t1}")
            g(f"v_cmp_gt_u32 vcc, 57, v{vL}\nv_add_u32 v{t1}, {FOFF+36}, v{t1}\ns_lshl_b32 {T0}, {T2}, 12\nv_cndmask_b32 v{vTw}, -16, v{t1}, vcc\nv_lshl_add_u32 v{vR0}, v{vL}, 4, {T0}\ns_lshl_b32 {T0}, {T2}, 11\ns_add_u32 {T0}, {T0}, 8192\nv_lshl_add_u32 v{vR1}, v{vL}, 4, {T0}")
        g = G.append
        if role == "C": g(f"s_and_b32 {T0}, {S_W}, 1\ns_lshl_b32 {T0}, {T0}, 10\nv_add_u32 v{vOw}, {T0}, v{vR0}")
        else: g(f"s_mul_i32 {T0}, {T2}, 18432\ns_add_u32 {T0}, {T0}, {R0B + 2048}\nv_lshl_add_u32 v{vOw}, v{vL}, 4, {T0}")
        if role == "C": g(f"v_add_u32 v{vT+1}, {SPB-XB}, v{vR1}\nv_xor_b32 v{vT+2}, 32, v{vTw}\ns_lshr_b32 {T0}, {S_W}, 1\ns_lshl_b32 {T0}, {T0}, 6\ns_add_u32 {H0}, {T0}, {FL}")
        g(f"v_lshl_add_u32 v{vT+3}, v{vL}, 3, v{vXs}\nv_lshl_add_u32 v{vT+4}, v{vL}, 3, v{vXp}")
        if aout:
            assert widev and wide
            g(f"v_lshrrev_b32 v{t0}, 3, v{vL}\nv_mul_u32_u24 v{t0}, 2304, v{t0}\nv_and_b32 v{vXp}, 7, v{vL}\nv_lshl_add_u32 v{vXp}, v{vXp}, 4, v{t0}\ns_add_u32 {T0}, {S_ROW0}, 16\ns_mul_i32 {T0}, {T0}, 1152\nv_add_u32 v{vXp}, {T0}, v{vXp}")
            g(f"s_mul_i32 {T0}, {S_W}, 18432\ns_lshl_b32 {T1}, {S_J}, 7\ns_add_u32 {T0}, {T0}, {T1}\nv_add_u32 v{vOA}, {T0}, v{vXp}")
            if role == "C": g(f"s_mov_b64 {sp(sX)}, {sp(sOut)}")
            else:
                g(f"s_mov_b32 {S_DM}, 0x3ffff")
                if late67: g = G67.append
                g(f"s_mul_i32 {T0}, {T2}, 36864\nv_add_u32 v{vAo}, {T0}, v{vXp}\nv_add_u32 v{vAo+1}, 18432, v{vAo}\ns_mul_i32 {T0}, {T2}, 18432\ns_add_u32 {T0}, {T0}, 73728\nv_add_u32 v{vAo+2}, {T0}, v{vXp}")
                g(f"s_lshl_b32 {T0}, {S_J}, 1\ns_add_u32 {T0}, {T0}, {T2}\ns_lshl_b32 {T0}, {T0}, 2\ns_add_u32 {T0}, {T0}, {FOFF+896}\nv_lshl_add_u32 v{vDs}, v{vL}, 20, {T0}\nv_and_b32 v{vDp}, 31, v{vL}\nv_lshlrev_b32 v{vDp}, 2, v{vDp}\nv_add_u32 v{vDp}, {FOFF+896}, v{vDp}")
        return G

    def decide(tag):
        a(f"s_cmp_lg_u32 {S_COL}, {S_FV}\ns_cbranch_scc1 L_{tag}q\nL_{tag}f:")
        return (f"L_{tag}q:\ns_load_dword {S_COL}, {sp(sEx)}, {FOFF+768} glc\ns_waitcnt lgkmcnt(0)\ns_cmp_eq_u32 {S_COL}, {S_FV}\ns_cbranch_scc1 L_{tag}f\n"
                f"s_add_u32 s{sD}, s{sD}, {SLOWOFF}\ns_addc_u32 s{sD+1}, s{sD+1}, 0\n" +
                (f"s_add_u32 s{sX}, s{sK2+2}, {SLOW2}\ns_addc_u32 s{sX+1}, s{sK2+3}, 0\ns_mov_b32 {S_DM}, 0\n" if aout else "") + f"s_branch L_{tag}s")
    bars = []
    for c in range(9):
        if c in fine: bars += [(9 * c + 6, 2 * c), (9 * c + 9, 2 * c + 1)]
        else: bars += [(9 * c + 9, 2 * c)]
    barsteps = {k for _, k in bars}

    a(f"s_lshl_b32 {S_LB}, {S_LB}, 4\nv_lshrrev_b32 v{t3}, 3, v0\nv_bfe_u32 v{t2}, v0, 4, 3\nv_and_or_b32 v{t1}, v0, 8, v{t2}\nv_and_or_b32 v{t1}, v{t3}, 16, v{t1}\nv_and_b32 v{t0}, 4, v{t2}")
    a(f"v_xor_b32 v{t2}, v{t2}, v0\nv_and_b32 v{t2}, 7, v{t2}\nv_cmp_gt_u32 vcc, 28, v{t1}\nv_lshl_add_u32 v{t1}, v{t1}, 1, {S_ROW0}\nv_mul_u32_u24 v{t1}, 1152, v{t1}")
    a(f"v_lshl_add_u32 v{vA}, v{t2}, 4, v{t1}\nv_add_u32 v{vA+1}, 73728, v{vA}\nv_add_u32 v{vA+2}, 147456, v{vA}\nv_cndmask_b32 v{vA+2}, -16, v{vA+2}, vcc")
    a(f"v_and_or_b32 v{t0}, v{t3}, 2, v{t0}\nv_xor_b32 v{t0}, v{t0}, v0\nv_and_b32 v{t0}, 7, v{t0}\ns_lshl_b32 {T2}, {S_J}, 7\nv_lshl_add_u32 v{t0}, v{t0}, 4, {T2}")
    a(f"s_and_b32 {T0}, {S_RGL}, 1\ns_lshl_b32 {T0}, {T0}, 5\nv_or_b32 v{t4}, {T0}, v{t3}\ns_movk_i32 {T1}, 3456\nv_mad_u32_u24 v{vB}, v{t4}, {T1}, v{t0}\nv_xor_b32 v{t4}, 32, v{t4}\nv_mad_u32_u24 v{vB+1}, v{t4}, {T1}, v{t0}")
    if False: pass
    elif lat:
        order = []
        for gs in lat:
            for r_ in range(3):
                o = []; b_ = 0
                for n_ in gs:
                    o += [b_ + (p + r_ * max(1, (n_ + 1) // 3)) % n_ for p in range(n_)]; b_ += n_
                assert sorted(o) == list(range(9)); order.append(o)
        s68 = f"s_mul_i32 s68, {S_J}, 11\ns_lshr_b32 s68, s68, 5\ns_mul_i32 s68, s68, 3\ns_sub_u32 s68, {S_J}, s68\ns_mul_i32 s68, s68, 3\ns_add_u32 s68, s68, {S_RGL}"
        if max(o[0] for o in order) <= 1:
            m_ = sum(order[(sl_ % 3) * 3 + sl_ // 9][0] << sl_ for sl_ in range(27))
            a(f"s_bitcmp1_b32 {m_}, {S_SLOT}\ns_addc_u32 {S_C}, {S_XCD}, 0")
        else:
            first = sum(o[0] << (2 * k) for k, o in enumerate(order))
            a(s68); s68 = ""
            a(f"s_lshl_b32 {S_C}, s68, 1\ns_lshr_b32 {S_C}, {first}, {S_C}\ns_and_b32 {S_C}, {S_C}, 3\ns_add_u32 {S_C}, {S_C}, {S_XCD}\ns_sub_u32 {S_A}, {S_C}, 9\ns_min_u32 {S_C}, {S_C}, {S_A}")
    else: a(f"s_mov_b32 {S_C}, {S_XCD}")
    G = [f"v_and_b32 v{vL}, 63, v0\nv_and_b32 v{t1}, 6, v{t3}\nv_xor_b32 v{t1}, v{t1}, v{vL}\nv_and_b32 v{t1}, 7, v{t1}\nv_lshl_add_u32 v{t1}, v{t1}, 4, {T2}\nv_mul_u32_u24 v{t3}, 1152, v{t3}\nv_add_u32 v{vWoG}, v{t1}, v{t3}"] + setup_groups("L")
    aloc = (lambda c: (SLOT, 2 * SLOT, WOB + 24576, 0)[c % 4]) if a4 else (lambda c: slot_of(c) * SLOT)
    assert not a4 or (len(wsteps) <= 4 and wo_pre <= 6)
    ops = []; meta = []; cstart = {}
    nW = len(wsteps); nlate = 2 * (9 - nW); assert nW <= 6 and wo_pre <= nlate
    if wo_pre == nlate: wotouch = 0
    for c in range(9):
        sl = slot_of(c) * SLOT; cstart[c] = len(ops)
        for n in range(3): ops.append((vA + n, sX, S_A, 0, aloc(c) + n * 4096))
        for n in range(2):
            for sec in range(3): ops.append((vB + n, sWq, S_B, sec * 1152, sl + 12288 + sec * 8192 + n * 4096))
        meta += [("C", c, k) for k in range(9)]
        for k, c_ in enumerate(wsteps):
            if c_ == c:
                ops += [(vWoG, sWo, S_A, 0, None)] * 2; meta += [("M", k, 0), ("M", k, 1)]
    for n in range(wo_pre): ops.append((vWoG, sWo, S_A, 0, WOB + n * 4096)); meta.append(("W", n, 0))
    bars = [(cstart[k >> 1] + cnt - 9 * (k >> 1), k) for cnt, k in bars]
    bi = 0
    late = []
    def at16():
        a(f"v_mov_b32 v{vFl}, {FL}\nds_read_b32 v{t0}, v{vFl}")
    et = f"buffer_load_dword v{vWoG+3}, v{vWoG+3}, {srd(sEx)}, s{S_Q} offen sc1"
    if etouch:
        G.append(f"s_mul_i32 {T0}, {S_LB}, 3\nv_cmp_gt_u32 vcc, 24, v{vL}\nv_lshl_add_u32 v{t0}, v{vL}, 7, {T0}\nv_bfrev_b32 v{t1}, 2\nv_cndmask_b32 v{vWoG+3}, v{t1}, v{t0}, vcc")
    if wotouch:
        G.append(f"s_lshr_b32 {T0}, {S_LB}, 4\nv_add_u32 v{t0}, {T0}, v{vL}\nv_mul_u32_u24 v{t0}, 3, v{t0}\nv_add_u32 v{t0}, {S_RGL}, v{t0}\nv_cmp_gt_u32 vcc, {32*nlate-32*wo_pre}, v{t0}\ns_lshl_b32 {T0}, {S_J}, 6\ns_add_u32 {T0}, {T0}, {32*wo_pre}\nv_add_u32 v{t0}, {T0}, v{t0}")
        G.append(f"v_subrev_u32 v{t1}, 576, v{t0}\nv_min_u32 v{t0}, v{t0}, v{t1}\nv_mul_u32_u24 v{t0}, 1152, v{t0}\ns_lshl_b32 {T0}, {S_J}, 7\nv_add_u32 v{t0}, {T0}, v{t0}\nv_cndmask_b32 v{vWoG+2}, -16, v{t0}, vcc")
    def hstub():
        nsv = ns[0]; ns[0] = 1
        a(f"L_help:\ns_cmp_ge_u32 s2, 256\ns_cbranch_scc1 L_end\nv_and_b32 v{vL}, 63, v0")
        a(f"s_sub_u32 {T0}, {S_SLOT}, 27\ns_lshl_b32 {T0}, {T0}, 6\nv_add_u32 v2, {T0}, v{vL}\ns_lshr_b32 {T0}, {S_XCD}, 1\ns_mul_i32 {T0}, {T0}, 510\ns_and_b32 {T1}, {S_XCD}, 1\ns_add_u32 {T0}, {T0}, {T1}")
        a(f"v_cmp_gt_u32 vcc, 262, v2\nv_lshl_add_u32 v2, v2, 1, {T0}\nv_mul_u32_u24 v2, 1152, v2\ns_add_u32 {T1}, {S_XCD}, {S_W}\ns_add_u32 {T1}, {T1}, 1\ns_sub_u32 {T2}, {T1}, 9\ns_min_u32 {T1}, {T1}, {T2}\ns_lshl_b32 {T1}, {T1}, 7")
        a(f"v_bfrev_b32 v3, 2\nv_cndmask_b32 v2, v3, v2, vcc\ns_waitcnt lgkmcnt(0)")
        if sset != "e2e": st()
        a(f"buffer_load_dword v10, v2, {srd(sX)}, {T1} offen\ns_branch L_help2")
        ns[0] = nsv
    nx = 0
    xpos = None; bi_hs3 = None
    def landedL(i, nout):
        tot = i + nx - nout
        return tot - (1 if (xpos is not None and tot > xpos) else 0)
    m0v = None; nG = len(G)
    def setm0(val):
        nonlocal m0v
        if m0v is not None and -32768 <= val - m0v <= 32767: a(f"s_addk_i32 m0, {(val - m0v) & 0xffff}")
        else: a(f"s_add_u32 m0, {S_LB}, {val}")
        m0v = val
    for i, (v, s, so, off, dst) in enumerate(ops):
        if i == 9 and tramp: a("s_branch L_tskip\n" + "s_nop 0\n" * tpad + "L_tramp:\ns_branch L_comp\nL_tskip:")
        if i == hpos:
            a("s_branch L_hskip"); hstub(); a("L_hskip:")
        if bi_hs3 is not None and bi > bi_hs3 and xpos is None and meta[i][0::2] != ("M", 1):
            assert i < cstart[8] + 6
            a(f"s_mov_b32 m0, {FL}\nbuffer_load_dword v{vWoG+4}, {srd(sEx)}, 0 offen sc1 lds")
            xpos = i; nx = 1; m0v = None
        kind_, c_, k_ = meta[i]
        if kind_ == "M":
            m0v = None
            if k_ == 0:
                if lat: a(f"s_bfe_u32 {S_A}, s70, {(4 << 16) | (4 * c_)}")
                else: a(f"s_mov_b32 {S_A}, {9 - nW + c_}")
                a(f"s_lshl_b32 {S_B}, {S_A}, 13\ns_add_u32 {S_B}, {S_B}, {S_LB}\ns_add_u32 m0, {S_B}, {WOB}\ns_add_u32 {S_A}, {S_A}, {S_J}\ns_sub_u32 {S_B}, {S_A}, 9\ns_min_u32 {S_A}, {S_A}, {S_B}\ns_mul_i32 {S_A}, {S_A}, 73728")
            else: a(f"s_addk_i32 m0, 4096\ns_add_u32 {S_A}, {S_A}, 36864")
            assert len(G) <= nG - 2
        else: setm0(dst - off)
        if i == D:
            for _ in range(spread): a(G.pop(0))
        elif i > D and G: a(G.pop(0))
        if i - 1 in hs:
            k = hs.index(i - 1)
            ld = [f"s_load_dword {H0}, {sp(sK2)}, {S_COL}", f"s_load_dword {H0}, {sp(sEx)}, {FOFF+768}"][k >> 1]
            if k == 0: a(f"s_lshl_b32 {S_COL}, {S_XCD}, 5\n{ld}")
            else: a(f"s_cmp_eq_u32 {S_W}, 7\ns_cbranch_scc0 L_hs{k}b")
            if k == 1:
                a(f"L_hs1c:\ns_waitcnt lgkmcnt(0)\ns_cmp_eq_u32 {H0}, 0\ns_cbranch_scc1 L_hs1\nL_hs1d:\ns_atomic_add {S_FV}, {sp(sEx)}, {FOFF+768}")
                late.append(f"L_hs1:\n{SPIN}L_hs1d\ns_sleep 2\n{ld} glc\ns_branch L_hs1c")
            if k == 2: a(ld + " glc")
            if k == 3:
                a(f"L_hs3c:\ns_waitcnt lgkmcnt(0)\ns_and_b32 {H0}, {H0}, 63\ns_cmp_lt_u32 {H0}, 9\ns_cbranch_scc1 L_hs3")
                late.append(f"L_hs3:\n{SPIN}L_hs3b\ns_sleep 2\n{ld} glc\ns_branch L_hs3c")
            if k: a(f"L_hs{k}b:")
            if k == 3: bi_hs3 = bi
            if k == 1: assert bars[bi - 1][1] >= sbar and sbar in barsteps
        if kind_ == "C" and k_ == 0:
            if c_ == 1 and lat:
                pk = [sum(x << (4 * k) for k, x in enumerate(o[1:])) for o in order]
                pw = []
                for gs in lat:
                    grp = [g_ for g_, n_ in enumerate(gs) for _ in range(n_)]
                    for r_ in range(3):
                        o = []
                        for k, st_ in enumerate(wsteps):
                            mem = [x for x, y in enumerate(wsteps) if grp[y] == grp[st_]]
                            per_ = wsteps.count(wsteps[mem[0]])
                            if wrot: mem = list(range(nW)); per_ = wrot
                            o.append(9 - nW + mem[(mem.index(k) + r_ * per_) % len(mem)])
                        pw.append(sum(x << (4 * k) for k, x in enumerate(o)))
                a(s68)
                a(f"s_mov_b32 s69, {pk[0]}\ns_mov_b32 s70, {pw[0]}")
                for k in range(1, 9):
                    if pk[k] != pk[0] or pw[k] != pw[0]: a(f"s_cmp_eq_u32 s68, {k}\ns_cselect_b32 s69, {pk[k]}, s69" + (f"\ns_cselect_b32 s70, {pw[k]}, s70" if pw[k] != pw[0] else ""))
            if i and lat: a(f"s_bfe_u32 {S_C}, s69, {(4 << 16) | (4 * (c_ - 1))}\ns_add_u32 {S_C}, {S_C}, {S_XCD}\ns_sub_u32 {S_A}, {S_C}, 9\ns_min_u32 {S_C}, {S_C}, {S_A}")
            elif i: a(f"s_add_u32 {S_C}, {S_C}, 1\ns_cmp_eq_u32 {S_C}, 9\ns_cselect_b32 {S_C}, 0, {S_C}")
            a(f"s_lshl_b32 {S_A}, {S_C}, 7")
        if kind_ == "C" and k_ == 1:
            a(f"s_mul_i32 {S_B}, {S_C}, {64*3456}")
        if kind_ == "W":
            assert not G
            a(f"s_mul_i32 {S_A}, s{S_Q+(c_>>1)}, 6" if c_ % 2 == 0 else f"s_add_u32 {S_A}, {S_A}, 36864")
        if i == 0:
            a("s_waitcnt lgkmcnt(0)"); st()
        Dc = lambda: Db if isinstance(Db, int) else int(Db[bars[bi][1] >> 1], 16)
        needk = 2 * (c_ - (3 if a4 and k_ < 3 else 2)) if kind_ == "C" and c_ >= 3 else (14 if kind_ == "W" else -1)
        while bi < len(bars) and (landedL(i, Dc()) >= bars[bi][0] or bars[bi][1] <= needk):
            a(f"s_waitcnt vmcnt({max(n_ for n_ in range(40) if landedL(i, n_) >= bars[bi][0])})")
            st("gemm"); a("s_barrier"); bi += 1
            if bars[bi - 1][1] == 16: at16()
        a(f"buffer_load_dwordx4 v{v}, {srd(s)}, {so} offen" + (f" offset:{off}" if off else "") + " lds")
    assert xpos is not None and WL >= 4
    wt = f"buffer_load_dword v{vWoG+2}, v{vWoG+2}, {srd(sWo)}, 0 offen"
    if etouch == 1: a(et)
    if wotouch == 1: a(wt)
    while bi < len(bars):
        a(f"s_waitcnt vmcnt({len(ops) + (wotouch == 1) + (etouch == 1) - bars[bi][0]})")
        st("gemm"); a("s_barrier"); bi += 1
        if bars[bi - 1][1] == 16: at16()
    if wotouch == 2: a(wt)
    if etouch == 2: a(et)
    wowait = f"s_waitcnt vmcnt({(wotouch > 0) + (etouch > 0)})"
    st()
    if aout: a(f"s_mov_b64 {sp(sX)}, {sp(sOut)}")
    a(f"s_waitcnt lgkmcnt(0)\nv_readfirstlane_b32 {S_COL}, v{t0}\ns_mul_i32 {S_FV}, {S_FV}, {10 if force_sc1 else 9}\ns_cmp_lt_u32 {S_W}, 6\ns_cbranch_scc1 L_attnL")
    late.append(decide("attnD")); a("L_attnDs:")
    wosig = f"s_mov_b64 exec, 1\nds_add_u32 v{vFl}, v{vOne} offset:4\ns_mov_b64 exec, -1"
    frags = [(k, 0, ti) for k in range(2) for ti in range(3)]
    for k in range(2): frags += [(k, q, ti) for q in range(1, 9) for ti in range(2)] + [(k, q, 2) for q in range(1, 9)]
    floc = lambda f: (0, f) if f < 18 else ((1, 2 * f) if f < 25 else ((1, 2 * (f - 25)) if f < 43 else (0, (0 if reuse else 36) + f - 43)))
    assert reuse == 2
    if reuse == 2:
        assert pre2 >= 7
        floc1 = floc; fr2 = [0, 2, 4, 6, 10, 12, 18, 20, 26, 28, 34]
        floc = lambda f: (2, 2 * (f - 18)) if 18 <= f < 25 else (floc1(f) if f < 43 else (2, 15 + fr2[f - 43]))
        nowar = 1
    bstart = (6, 22, 30, 46)
    bmask = ((1 << 18) - 1, (0x1ff << 18) | (0 if no54 else 7 << 54), ((1 << 18) - 1) << 27, 0x1ff << 45)
    a(f"s_setprio {lprio}\nv_add_u32 v{vWoG+1}, {-16*1152 & 0xffffffff}, v{vWoG}")
    if early: a("s_barrier")
    a(wowait)
    a("s_barrier")
    for k, n in enumerate(range(wo_pre, nlate)):
        for h in range(2):
            setm0(WOB + n * 4096 - h * 2048)
            if h == 0: a(f"s_mul_i32 {S_A}, s{S_Q+(n>>1)}, 6" if n % 2 == 0 else f"s_add_u32 {S_A}, {S_A}, 36864")
            if 2 * k + h >= D3: a(f"s_waitcnt vmcnt({D3-1})")
            a(f"buffer_load_dwordx4 v{vWoG+h}, {srd(sWo)}, {S_A} offen lds")
    for x in G67: a(x)
    a(f"s_and_b32 {T2}, {S_W}, 1\ns_mul_i32 {S_A}, {T2}, 18432\ns_lshl_b32 {S_B}, {T2}, 10")
    a(f"s_getpc_b64 s[60:61]\ns_lshl_b32 {H0}, {T2}, 6\ns_add_u32 {H0}, {H0}, {FL+64}")
    if wo_pre < nlate: a("s_waitcnt vmcnt(0)\n" + wosig)
    st()
    seq = []; ci = 0
    def landed(nout): return 6 + sum(1 for k in seq[:len(seq) - nout] if k == "F")
    def wait_ck():
        nonlocal ci
        nout = max(n for n in range(len(seq) + 1) if landed(n) >= cks[ci])
        if nout < len(seq): a(f"s_waitcnt vmcnt({nout})")
        st("post"); a("s_barrier"); ci += 1
    PL = 60
    pollb = lambda b: f"buffer_load_dword v{PL+b}, v{vTw}, {srd(sEx)}, 0 offen sc1"
    if border == 1: bmask = (bmask[0], bmask[1] | bmask[2], 0, bmask[3])
    for f, (kind, q, ti) in enumerate(frags):
        if f < 6: continue
        while ci < (1 if mk else len(cks)) and ckpos[ci] <= f: wait_ck()
        if f in bstart and not (nochk and f > 6) and bmask[bstart.index(f)]:
            b = bstart.index(f)
            poll2 = pollb(b)
            if b == 0: a(f"s_mov_b64 exec, {bmask[0]}\n{poll2}\ns_mov_b64 exec, -1" if pex else poll2); seq.append("P0")
            nout = seq[::-1].index(f"P{b}")
            a(f"s_mov_b32 s{sM}, {bmask[b] & 0xffffffff}\ns_mov_b32 s{sM+1}, {bmask[b] >> 32}\ns_waitcnt vmcnt({nout})")
            chk = f"v_cmp_ne_u32 vcc, 0, v{PL+b}\ns_nop 0\ns_andn2_b64 {sp(sM)}, {sp(sM)}, vcc\ns_cbranch_scc1 L_k{b}r"
            a(f"{chk}\nL_k{b}d:")
            if b == 0 and pdep > 1:
                pl = lambda k: f"buffer_load_dword v{PL+8+k}, v{vTw}, {srd(sEx)}, 0 offen sc1"
                x = "L_k0r:\n" + "".join(pl(k) + "\ns_nop 7\n" for k in range(pdep - 1)) + f"L_k0l:\n{SPIN}L_k0d\n"
                for k in range(pdep):
                    x += f"{pl((k - 1) % pdep)}\ns_waitcnt vmcnt({pdep-1})\nv_cmp_ne_u32 vcc, 0, v{PL+8+k}\ns_nop 0\ns_andn2_b64 {sp(sM)}, {sp(sM)}, vcc\ns_cbranch_scc0 L_k0d\n"
                late.append(x + "s_branch L_k0l")
            else:
                p2 = f"s_mov_b64 exec, {sp(sM)}\n{poll2}\ns_mov_b64 exec, -1" if pex else poll2
                if psl and b == 0: p2 = f"s_sleep {psl}\n" + p2
                late.append(f"L_k{b}r:\n{SPIN}L_k{b}d\n{p2}\ns_waitcnt vmcnt(0)\n{chk}\ns_branch L_k{b}d")
            st("post")
        if f == 25: assert ci >= 1 and lk1
        if f == warl and (pre2 < 18 or reuse) and not nowar: st("post"); a("s_barrier")
        if wb and f == wb[0]:
            a(f"s_lshl_b32 {T0}, {S_SLOT if wb[1] == 1 else S_J}, 3\ns_add_u32 {T0}, {T0}, {S_W}\ns_cmp_lg_u32 {T0}, {4*8+7}\ns_cbranch_scc1 L_nowb\nbuffer_wbl2 sc1\nL_nowb:")
        reg, idx = floc(f)
        off = kind * 1024 + (2048 if ti == 1 else 0)
        dst = (R0B, XB, SPB)[reg] + idx * 1024; so = f"s{S_Q+q}"
        if aout and f == dpos[0]:
            nout = max(n for n in range(len(seq) + 1) if landed(n) >= 30)
            a(("s_mov_b64 exec, 1\n" if dex else "") + f"s_waitcnt vmcnt({nout})\nbuffer_store_dword v{vOne}, v{vDs}, {srd(sEx)}, 0 offen" + ("\ns_mov_b64 exec, -1" if dex else "")); seq.append("D")
        if aout and kind == 0:
            a(f"s_add_u32 m0, {(S_A, S_B, S_B)[reg]}, {dst}")
            if ti != 1: a(f"s_mul_i32 {S_C}, {so}, 683\ns_lshr_b32 {S_C}, {S_C}, 16")
            a(f"buffer_load_dwordx4 v{vAo+ti}, {srd(sX)}, {S_C} offen sc1 lds")
        else:
            if dst < off:
                a(f"s_add_u32 {S_C}, {so}, {off}"); so = S_C; off = 0
            a(f"s_add_u32 m0, {(S_A, S_B, S_B)[reg]}, {dst - off}")
            a(f"buffer_load_dwordx4 v{vR1 if ti == 2 else vR0}, {srd(sD)}, {so} offen" + (f" offset:{off}" if off else "") + " sc1 lds")
        seq.append("F")
        polld = f"buffer_load_dword v{PL+4}, v{vDp}, {srd(sEx)}, 0 offen sc1"
        if dex: polld = f"s_mov_b64 exec, 0x3ffff\n{polld}\ns_mov_b64 exec, -1"
        if aout and f == dpos[1]: a(polld); seq.append("PD")
        if mk and f + 1 in cks[1:]:
            a(f"s_add_u32 m0, {H0}, {4*cks.index(f+1)}\ns_mov_b64 exec, 1\nglobal_load_lds_dword v{vL}, s[60:61]\ns_mov_b64 exec, -1"); seq.append("M"); st("p2")
        if f in ppos and not nochk:
            bm = bmask[ppos.index(f) + 1]
            if pex == 2: a(f"s_mov_b32 exec_lo, {bm & 0xffffffff}\ns_mov_b32 exec_hi, {bm >> 32}")
            a(pollb(ppos.index(f) + 1)); seq.append(f"P{ppos.index(f) + 1}")
            if pex == 2: a("s_mov_b64 exec, -1")
    if aout:
        chk = f"v_cmp_ne_u32 vcc, 0, v{PL+4}\ns_add_u32 m0, {H0}, {4*len(cks)}\ns_andn2_b32 {S_DM}, {S_DM}, vcc_lo\ns_cbranch_scc1 L_kdr"
        a(f"s_waitcnt vmcnt({seq[::-1].index('PD')})\n{chk}\nL_kdd:\ns_mov_b64 exec, 1\nglobal_load_lds_dword v{vL}, s[60:61]\ns_mov_b64 exec, -1")
        late.append(f"L_kdr:\n{SPIN}L_kdd\n{polld}\ns_waitcnt vmcnt(0)\n{chk}\ns_branch L_kdd")
        assert len(cks) < 16
    while not mk and ci < len(cks): wait_ck()
    if mk:
        st("post"); a("s_waitcnt vmcnt(0)"); st("post")
    a("s_branch L_fin")
    for x in late: a(x)

    if hpos is None: hstub()
    a("L_help2:")
    ns[0] = 2
    if aout: a(f"s_mov_b64 {sp(sX)}, {sp(sWo+2)}")
    a(f"s_mov_b32 s{sWo+2}, 663552\ns_mov_b32 s{sWo+3}, 0x20000\ns_mul_i32 {T0}, {S_XCD}, {3*GSZ}\ns_add_u32 s{sEx}, s{sK2+2}, {T0}\ns_addc_u32 s{sEx+1}, s{sK2+3}, 0\ns_mov_b32 s{sEx+2}, {3*GSZ}\ns_mov_b32 s{sEx+3}, 0x20000")
    if "o" in help: a("v_mov_b32 v12, -1")
    a(f"s_cmp_lg_u32 {S_SLOT}, 31\ns_cbranch_scc1 L_noinit\ns_cmp_lg_u32 {S_W}, 7\ns_cbranch_scc1 L_noinit2")
    a(f"v_lshlrev_b32 v3, 4, v{vL}\nv_mov_b32 v4, 0\nv_mov_b32 v5, 0\nv_mov_b32 v6, 0\nv_mov_b32 v7, 0")
    for g_ in range(3): a(f"s_mov_b32 {T0}, {g_*GSZ + FOFF}\nbuffer_store_dwordx4 v[4:7], v3, {srd(sEx)}, {T0} offen sc1")
    a(f"s_barrier\ns_lshl_b32 {T0}, {S_XCD}, 5\ns_mov_b32 {T1}, 1\ns_waitcnt vmcnt(0)\ns_atomic_or {T1}, {sp(sK2)}, {T0}\ns_mov_b32 exec_hi, 0xff00ffff")
    for g_ in range(3): a(f"s_mov_b32 {T0}, {g_*GSZ + FOFF}\nbuffer_load_dwordx4 v[4:7], v3, {srd(sEx)}, {T0} offen sc1")
    a("s_mov_b64 exec, -1\ns_branch L_noinit\nL_noinit2:")
    if not oord:
        a(f"s_lshl_b32 {T0}, {S_W}, 6\nv_add_u32 v2, {T0}, v{vL}\ns_mul_i32 {T0}, {S_XCD}, 216\ns_add_u32 {T0}, {T0}, {512*27}\nv_cmp_gt_u32 vcc, 216, v2\nv_add_lshl_u32 v8, v2, {T0}, 7\ns_mul_i32 {T0}, {S_XCD}, 648\nv_cndmask_b32 v11, -1, v8, vcc")
        a(f"v_add_lshl_u32 v12, v2, {T0}, 7\nv_cmp_le_u32 vcc, 248, v2\nv_add_u32 v13, {200*128}, v12\ns_barrier\nv_cndmask_b32 v13, -1, v13, vcc")
        a(f"buffer_load_dword v11, v11, {srd(sWq)}, 0 offen\nbuffer_load_dword v13, v13, {srd(sWo)}, 0 offen\nbuffer_load_dword v12, v12, {srd(sWo)}, 0 offen")
    else:
        def woaddr(dst, src):
            a(f"v_lshrrev_b32 v20, 3, v{src}\nv_mul_u32_u24 v21, 57, v20\nv_lshrrev_b32 v21, 9, v21\nv_mul_u32_u24 v22, 9, v21\nv_sub_u32 v20, v20, v22\nv_sub_u32 v21, v20, v21\nv_add_u32 v21, 8, v21")
            a(f"v_subrev_u32 v22, 9, v21\nv_min_u32 v21, v21, v22\nv_and_or_b32 v22, v{src}, 7, {T1}\nv_lshl_add_u32 v21, v21, 6, v22\nv_mul_u32_u24 v21, 1152, v21\nv_lshl_add_u32 v21, v20, 7, v21\nv_cndmask_b32 v{dst}, -1, v21, vcc")
        a(f"s_lshl_b32 {T0}, {S_W}, 6\nv_add_u32 v2, {T0}, v{vL}\ns_mul_i32 {T0}, {S_XCD}, 216\ns_add_u32 {T0}, {T0}, {512*27}\nv_cmp_gt_u32 vcc, 216, v2\nv_add_lshl_u32 v8, v2, {T0}, 7\ns_lshl_b32 {T1}, {S_XCD}, 3\nv_cndmask_b32 v11, -1, v8, vcc")
        a(f"v_cmp_le_u32 vcc, 216, v2\nv_subrev_u32 v9, 216, v2\nv_and_b32 v9, 0x1ff, v9\ns_barrier\nbuffer_load_dword v11, v11, {srd(sWq)}, 0 offen")
        woaddr(13, 9)
        a(f"buffer_load_dword v13, v13, {srd(sWo)}, 0 offen\nv_cmp_gt_u32 vcc, 416, v2\nv_add_u32 v9, 232, v2")
        woaddr(12, 9)
        if "o" not in help: a(f"buffer_load_dword v12, v12, {srd(sWo)}, 0 offen")
    a("L_noinit:")
    a(f"s_sub_u32 {T0}, {S_SLOT}, 27\ns_mul_i32 {T1}, {S_W}, 5\ns_add_u32 {T3}, {T0}, {T1}\ns_lshl_b32 {T0}, {T3}, 6\nv_add_u32 v2, {T0}, v{vL}")
    T = 2560; r = 14; wl = False
    for h in help:
        if h == "E" and aout:
            a(f"v_lshrrev_b32 v8, 3, v2\nv_mul_u32_u24 v9, {(1<<16)//54+1}, v8\nv_lshrrev_b32 v9, 16, v9\nv_lshl_add_u32 v8, v8, 1, v9\nv_add_u32 v8, 1, v8\nv_and_b32 v9, 7, v2\nv_lshl_add_u32 v8, v8, 3, v9\nv_cmp_gt_u32 vcc, 1296, v2\nv_lshlrev_b32 v8, 7, v8\nv_sub_u32 v20, {T-1}, v2\nv_cndmask_b32 v8, -1, v8, vcc")
            a(f"buffer_load_dword v{r}, v8, {srd(sEx)}, 0 offen"); r += 1
            a(f"v_mul_u32_u24 v21, {(1<<18)//9+1}, v20\nv_lshrrev_b32 v21, 18, v21\nv_mul_u32_u24 v22, 9, v21\nv_sub_u32 v22, v20, v22\nv_mul_u32_u24 v23, {(1<<16)//48+1}, v21\nv_lshrrev_b32 v23, 16, v23\nv_mad_u32_u24 v21, v23, 37, v21")
            a(f"s_lshr_b32 {T0}, {S_XCD}, 1\ns_mul_i32 {T0}, {T0}, 510\ns_and_b32 {T1}, {S_XCD}, 1\ns_add_u32 {T0}, {T0}, {T1}\ns_add_u32 {T0}, {T0}, 16\nv_cmp_gt_u32 vcc, 1296, v20\nv_lshl_add_u32 v21, v21, 1, {T0}\nv_mul_u32_u24 v21, 1152, v21\nv_lshl_add_u32 v21, v22, 7, v21\nv_cndmask_b32 v21, -1, v21, vcc")
            a(f"buffer_load_dword v{r}, v21, {srd(sX)}, 0 offen"); r += 1
        elif h == "E":
            a(f"v_mul_u32_u24 v8, {(1<<20)//864+1}, v2\nv_lshrrev_b32 v8, 20, v8\nv_lshl_add_u32 v8, v8, 3, v2\nv_lshlrev_b32 v8, 7, v8")
            a(f"buffer_load_dword v{r}, v8, {srd(sEx)}, 0 offen"); r += 1
            a(f"v_add_u32 v8, {T+16}, v2\nv_cmp_gt_u32 vcc, 32, v2\nv_lshlrev_b32 v8, 7, v8\nv_cndmask_b32 v8, -1, v8, vcc\nbuffer_load_dword v{r}, v8, {srd(sEx)}, 0 offen"); r += 1
        if h == "O":
            a("v_lshlrev_b32 v9, 7, v2")
            for k in range(3):
                a(f"s_mov_b32 {T0}, {k*T*128}\nbuffer_load_dword v{r}, v9, {srd(sWo)}, {T0} offen"); r += 1
        if h.isdigit():
            if not wl:
                wl = True
                a(f"s_mul_i32 {T0}, {T3}, 44\nv_add_u32 v30, {T0}, v{vL}\nv_mul_u32_u24 v31, {(1<<16)//27+1}, v30\nv_lshrrev_b32 v31, 16, v31\nv_mul_u32_u24 v32, 27, v31\nv_sub_u32 v32, v30, v32")
                a(f"v_cmp_gt_u32 vcc, 44, v{vL}\nv_cmp_gt_u32 {sp(sM)}, 64, v31\nv_mul_u32_u24 v31, 3456, v31\nv_lshl_add_u32 v31, v32, 7, v31\ns_and_b64 vcc, vcc, {sp(sM)}\nv_bfrev_b32 v33, 2\nv_cndmask_b32 v31, v33, v31, vcc")
                if cj: a(f"v_subrev_u32 v33, 9, v32\nv_min_u32 v32, v32, v33\nv_subrev_u32 v33, 9, v32\nv_min_u32 v32, v32, v33\nv_add_u32 v32, {S_XCD}, v32\nv_subrev_u32 v33, 9, v32\nv_min_u32 v32, v32, v33")
                else: a(f"v_mov_b32 v32, {S_XCD}")
                a(f"s_mov_b32 {T2}, {64*3456}")
            a(f"v_add_u32 v33, {int(h)}, v32\nv_subrev_u32 v34, 9, v33\nv_min_u32 v33, v33, v34\nv_mad_u32_u24 v33, v33, {T2}, v31\nbuffer_load_dword v{r}, v33, {srd(sWq)}, 0 offen"); r += 1
        if h == "o": a(f"buffer_load_dword v12, v12, {srd(sWo)}, 0 offen")
        if h == "H":
            SPINH = SPIN.replace("0x40000", "64")
            a(f"s_cmp_lg_u32 {S_W}, 0\ns_cbranch_scc1 L_hw2\ns_mov_b32 {S_SP}, 0\ns_lshl_b32 {T1}, {S_XCD}, 5\ns_waitcnt vmcnt(0)")
            a(f"L_hw0:\ns_load_dword {T0}, {sp(sK2)}, {T1} glc\n{SPINH}L_hw2\ns_waitcnt lgkmcnt(0)\ns_cmp_eq_u32 {T0}, 0\ns_cbranch_scc1 L_hw0")
            a(f"s_sub_u32 {T1}, {S_SLOT}, 27\ns_lshr_b32 {T1}, {T1}, 1\ns_mul_i32 {T1}, {T1}, {GSZ}\ns_add_u32 {T1}, {T1}, {FOFF+768}")
            a(f"L_hw1:\ns_load_dword {T0}, {sp(sEx)}, {T1} glc\n{SPINH}L_hw2\ns_waitcnt lgkmcnt(0)\ns_and_b32 {T0}, {T0}, 63\ns_cmp_lt_u32 {T0}, 9\ns_cbranch_scc1 L_hw1\nL_hw2:\ns_waitcnt lgkmcnt(0)\ns_barrier")
        if h in "FG":
            a(f"s_cmp_lg_u32 {T3}, 0\ns_cbranch_scc1 L_hf2")
            a(f"v_mul_u32_u24 v20, 57, v{vL}\nv_lshrrev_b32 v20, 9, v20\nv_mul_u32_u24 v21, 9, v20\nv_sub_u32 v21, v{vL}, v21\nv_lshrrev_b32 v22, 1, v20\nv_and_b32 v20, 1, v20\nv_mul_u32_u24 v22, {GSZ}, v22")
            a(f"v_lshl_add_u32 v22, v20, 7, v22\nv_lshl_add_u32 v22, v21, 2, v22\nv_add_u32 v22, {FOFF + (512 if h == 'F' else 0) + 72}, v22\ns_mov_b32 exec_hi, 0x3fffff\ns_mov_b32 {T0}, 0")
            a(f"L_hf0:\nbuffer_load_dword v23, v22, {srd(sEx)}, 0 offen sc1\ns_add_u32 {T0}, {T0}, 1\ns_cmp_ge_u32 {T0}, 96\ns_cbranch_scc1 L_hf2\ns_waitcnt vmcnt(0)\nv_cmp_eq_u32 vcc, 0, v23\ns_cbranch_vccnz L_hf0")
            st(); a("buffer_wbl2 sc1\nL_hf2:")
        if h == "w": a("s_waitcnt vmcnt(0)")
        if h == "b": a("s_barrier")
    if stamp:
        a("s_waitcnt vmcnt(0)"); st(); a("s_branch L_fin")
    else:
        a("s_endpgm")

    ns[0] = 2 if sset == 'e2e' else 1
    if cpad is None: a(".p2align 6")
    else: a(f".p2align 12\n.fill {cpad // 4}, 4, 0xbf800000")
    a(f"L_comp:\nv_and_b32 v{vL}, 63, v0")
    a(f"v_and_b32 v{t0}, 15, v{vL}\nv_lshrrev_b32 v{t1}, 4, v{vL}\nv_lshrrev_b32 v{t2}, 1, v{t0}\nv_xor_b32 v{t2}, v{t2}, v{t1}\nv_lshlrev_b32 v{t2}, 4, v{t2}")
    if hsw: a(f"s_and_b32 {T0}, {S_RGL}, 1\ns_lshl_b32 {T0}, {T0}, 6\nv_xor_b32 v{t2}, {T0}, v{t2}")
    a(f"v_lshl_add_u32 v{vRA}, v{t0}, 7, v{t2}\nv_xor_b32 v{vRA+1}, 64, v{vRA}\nv_add_u32 v{vRA+2}, {2*SLOT}, v{vRA}\nv_add_u32 v{vRA+3}, {2*SLOT}, v{vRA+1}")
    a(f"v_bfe_u32 v{t0}, v{vL}, 2, 2\nv_lshl_add_u32 v{t2}, v{t1}, 3, v{t0}\nv_lshlrev_b32 v{t2}, 7, v{t2}\nv_bfe_u32 v{t0}, v{vL}, 3, 2\nv_xor_b32 v{t0}, {S_W}, v{t0}\nv_lshl_add_u32 v{t2}, v{t0}, 5, v{t2}")
    a(f"v_and_b32 v{t0}, 3, v{vL}\nv_lshl_add_u32 v{t2}, v{t0}, 3, v{t2}\nv_add_u32 v{vRB}, 12288, v{t2}\nv_add_u32 v{vRB+1}, {2*SLOT}, v{vRB}")
    a(f"s_lshl_b32 {T0}, {S_W}, 9\ns_add_u32 {T0}, {T0}, {XB}\nv_lshl_add_u32 v{vXw}, v{vL}, 3, {T0}")
    a(f"s_and_b32 {T1}, {S_W}, 1\ns_mul_i32 {T1}, {T1}, 504\ns_sub_u32 {T0}, {T0}, {T1}\nv_lshl_add_u32 v{vXw+1}, v{vL}, 4, {T0}")
    if widev: a(f"s_lshl_b32 {T0}, {S_W}, 3\ns_lshr_b32 {T0}, 0x81010080, {T0}\ns_and_b32 {T0}, {T0}, 0xff\ns_lshl_b32 {T0}, {T0}, 3\ns_add_u32 {T0}, {T0}, {XB}\nv_lshl_add_u32 v{vXw}, v{vL}, 4, {T0}")
    a("s_waitcnt lgkmcnt(0)")
    st()
    if dbgpre:
        for k in range(8): a(f"v_mul_u32_u24 v{FR+k}, {0x35a7 + 977*k}, v{vL}\nv_mul_u32_u24 v{FR+k}, {0x2f31 + 331*k}, v{FR+k}\nv_and_b32 v{FR+k}, 0xbfffbfff, v{FR+k}")
    for gi_, x in enumerate(setup_groups("C")):
        a(x)
        for k in range(dbgpre): a(f"v_mfma_f32_16x16x32_bf16 v[{ACC+4*((gi_*dbgpre+k)%8)}:{ACC+4*((gi_*dbgpre+k)%8)+3}], v[{FR+4*(k&1)}:{FR+4*(k&1)+3}], v[{FR+4*(gi_&1)}:{FR+4*(gi_&1)+3}], 0")
    a(f"s_mul_i32 {S_FV}, {S_FV}, {10 if force_sc1 else 9}")
    a("\n".join(f"v_mov_b32 v{248+k}, -1" for k in range(4)))
    a(f"buffer_store_dwordx4 v[248:251], v{vO}, {srd(sD)}, s{S_Q} offen offset:1024\ns_add_u32 {T0}, s{S_Q}, 8192\ns_cmp_ge_u32 {S_W}, 2\ns_cbranch_scc1 L_nosent")
    a(f"buffer_store_dwordx4 v[248:251], v{vO}, {srd(sD)}, {T0} offen offset:1024\nL_nosent:")
    if touch:
        a(f"s_mov_b64 exec, 1\nbuffer_load_dword v{204}, v{vO}, {srd(sEx)}, s{S_Q} offen sc1\nbuffer_load_dword v{204+1}, v{vO}, {srd(sWo)}, 0 offen\nbuffer_load_dword v{204+2}, v{vSt+1}, {srd(sOut)}, 0 offen sc1\nbuffer_load_dword v{204+3}, v{vSt+2}, {srd(sOut)}, 0 offen sc1\ns_mov_b64 exec, -1")
    TO = (4, 3, 5, 0, 1, 2) if early else tuple(range(6))
    def reads(s):
        c = s >> 1; sl = slot_of(c); F = FR + 36 * (s & 1) if s < 17 else 212
        ra = vRA + 2 * (sl >> 1) + (s & 1); rb = vRB + (sl >> 1); o = (sl & 1) * SLOT
        hi_ = aloc(c) >= 2 * SLOT; ra = vRA + 2 * hi_ + (s & 1)
        A_ = lambda t: f"ds_read_b128 {vr(F+4*t,4)}, v{ra} offset:{aloc(c) - 2*SLOT*hi_ + t*2048}"
        B_ = lambda sec, h: f"ds_read_b64_tr_b16 {vr(F+24+4*sec+2*h,2)}, v{rb} offset:{o + sec*8192 + (s&1)*4096 + h*512}"
        if secmaj and s < 16: return [B_(0,0), B_(0,1)] + [A_(t) for t in range(6)] + [B_(1,0), B_(1,1), B_(2,0), B_(2,1)]
        to = TO if s >= 16 else range(6)
        return [B_(0,0), B_(0,1), A_(to[0]), B_(1,0), B_(1,1), B_(2,0), B_(2,1)] + [A_(t) for t in to[1:]]
    def mfmas(s):
        F = FR + 36 * (s & 1) if s < 17 else 212; L = []
        for t in (TO if s >= 16 else range(6)):
            for sec in range(3):
                d = vr(ACC + 24 * sec + 4 * t, 4); x = vr(F + 4 * t, 4); w = vr(F + 24 + 4 * sec, 4)
                x, w = (w, x) if sec < 2 else (x, w)
                L.append(f"v_mfma_f32_16x16x32_bf16 {d}, {x}, {w}, {d if s else 0}")
        if secmaj == 1 and s < 16: L = L[0::3] + L[1::3] + L[2::3]
        if secmaj == 2 and s < 16: L = L[0::3] + L[1::3][::-1] + L[2::3]
        return L
    a.reset()
    a(f"s_waitcnt lgkmcnt(0)\nv_mov_b32 v{vFl}, {FL}")
    if prio: a(f"s_setprio {prio}")
    stl("gemm")
    a("s_barrier")
    for r in reads(0): a.e(r)
    for s in range(16):
        M = mfmas(s)
        R = reads(s + 1)
        if s == 15 and 17 not in barsteps:
            R17 = reads(17); R = R[:7] + R17[:7] + R[7:9]; Rrest = [x for p in zip(R17[7:], reads(16)[9:] + ["", ""]) for x in p if x]
        p0 = (PB if isinstance(PB, int) else int(PB[(s + 1) >> 1], 16)) if (s + 1) in barsteps else p1st
        per = -(-len(R) // (18 - p0))
        if dbgpause and s in dbgpause[0]: a(f"s_sleep {dbgpause[1]}")
        if cw2 and s not in barsteps: a.lgkm0()
        for k, m in enumerate(M):
            if cw2 and k == cwk and s in barsteps and (s + 1) not in barsteps:
                n_ = 12 - len(R)
                if len(a.lq) > n_: a(f"s_waitcnt lgkmcnt({n_})"); a.lq = a.lq[len(a.lq) - n_:]
            if k == p0 and (s + 1) in barsteps:
                a.lgkm0()
                if s + 1 == sbar: a("s_waitcnt vmcnt(0)")
                a("s_barrier"); stl("gemm")
                if s + 1 in (2, 4, 10, 16): st("g2")
                if s + 1 in epts: st("e2e")
            if k >= p0:
                for r in R[:per]:
                    if not noread: a.e(r)
                R = R[per:]
            if not nomfma: a.e(m)
        assert not R
    M16, M17 = mfmas(16), mfmas(17)
    if 17 in barsteps:
        R17 = reads(17); RA = [x for x in R17 if "b128" in x] + [f"ds_read_b32 v{t0}, v{vFl}"]; RB = [x for x in R17 if "tr_b16" in x]
        for k in range(PB2):
            a.e(M16[k])
            if RA and k >= 2: a.e(RA.pop(0))
        assert not RA
        a("s_barrier")
        LEAD0 = PB2; LEAD = min(18, PB2 + 5); R = RB
    else:
        R = Rrest + [f"ds_read_b32 v{t0}, v{vFl}"]; LEAD0 = 0
    def cv(k):
        t, sec = divmod(k, 3); t = TO[t]; d = ACC + 24 * sec + 4 * t
        if sec < 2: a.e(f"v_cvt_pk_bf16_f32 v{d}, v{d}, v{d+1}\nv_cvt_pk_bf16_f32 v{d+1}, v{d+2}, v{d+3}")
        else: a.e(f"v_cvt_pk_bf16_f32 v{d}, v{d}, v{d+2}\nv_cvt_pk_bf16_f32 v{d+1}, v{d+1}, v{d+3}")
    def wr(k):
        t, sec = divmod(k, 3); t = TO[t]; d = ACC + 24 * sec + 4 * t
        a.e(f"ds_write_b64 v{vXw + (wide and sec < 2)}, {vr(d,2)} offset:{t*6144 + sec*2048}" + (" ; w=x0" if k == 8 else ""))
        if early and k == 8 + xk: a.e("s_barrier ; r=x0")
    if LEAD0:
        for r in R[:2]: a.e(r)
        R = R[2:]
    for k in range(LEAD0, LEAD):
        a.e(M16[k])
        for r in R[:2]: a.e(r)
        R = R[2:]
    for k in range(18):
        a.e(M17[k])
        for r in R[:2]: a.e(r)
        R = R[2:]
        if k >= WL: wr(k - WL)
        if k + LEAD < 18: a.e(M16[k + LEAD])
        if k >= 3: cv(k - 3)
        if k == 8: a.e(f"v_readfirstlane_b32 {S_COL}, v{t0}\ns_waitcnt vmcnt(0)")
    for k in range(max(0, 18 - WL), 14): wr(k)
    cv(15); cv(16); cv(17); wr(14); wr(15); wr(16); wr(17)
    a("L_postC:")
    a.lgkm0()
    st()
    lateC = decide("attnC")
    nsx = ns[0]

    def post(role, sfx, sm):
        late = []
        smB = sm
        if sfx[1] == "f" and not ntall: sm = ""
        ns[0] = nsx
        OA = 52; AF = 76; NA = 8; BB = 112
        Q, K, KP, QO, S = 112, 120, 128, 136, 152
        VR = {0: 192, 1: 196, 2: 200, 3: 52}
        VL = {0: 56, 1: 204, 2: 208, 3: 212}
        Pb = {0: 60, 4: 64, 1: 216, 2: 220, 3: 224}
        Ot = {0: 68, 3: 72, 1: 228, 2: 232}
        AB, RM, R_, PL = 76, 86, 104, 94
        Od = {1: 96, 2: 98, 0: 100, 3: 102}
        L = []
        def e(s): L.extend(x.strip() for x in s.split("\n") if x.strip())
        def flush(boost=None, hook=None, pollback=None, fapos=0):
            po = [x for x in L if "; PO" in x]; fa = [x for x in L if "; FA" in x]
            out, t = hz.sched([x for x in L if x not in po + fa], boost, vm_lat=vlC if role == "C" else vlL)
            if fa: out.insert(min(fapos, next(i for i, x in enumerate(out) if "w=sb" in x)), fa[0] + (f"\ns_setprio {prio}" if cback and role == "C" else ""))
            if po:
                isa = next(i for i, x in enumerate(out) if "; SA" in x); if0 = max(i for i, x in enumerate(out) if "; F0" in x or "; P1" in x)
                out.insert(max(if0 + 1, isa - pollback), po[0].split(";")[0])
            if po and cyield is not None and role == "C": out.insert(len(out) - cyield, "s_setprio 0")
            if po and lup is not None and role == "L": out.insert(lup, "s_setprio 2")
            if po and early and role == "L": out.insert(xpos2, "s_barrier")
            for k, x in enumerate(out):
                if stamp and sset == "b1" and k % 16 == 0: st("b1")
                if cw and po and any(f"v{vMV+t}," in x for t in range(4)) and not any("ds_read" in y for y in out[k:]): a.lgkm0()
                a.e(x)
                if hook and hook[0] in x: a.e(hook[1])
            L.clear()
        rd = lambda dst, base, sec, t: e(f"ds_read_b64 {vr(dst,2)}, v{base} offset:{sec*2048 + t*512}")
        def maskq(t):
            for d in range(2): e(f"v_and_b32 v{QO+4*t+d}, v{vM+2*t+d}, v{Q+2*t+d}\nv_xor_b32 v{QO+4*t+2+d}, v{QO+4*t+d}, v{Q+2*t+d}")
        ORD = {b: ((0, 2, 3, 1) if widev and b in (3, 4) else (0, 1, 3, 2)) for b in range(5)}
        def maskv(t):
            if widev:
                te, to_ = (1, 2) if t in (1, 2) else (0, 3)
                src = (VR[te], VR[te] + 1, VR[to_] + 1) if t == te else (VR[te] + 2, VR[te] + 3, VR[to_] + 3)
            else: src = (VR[t], VR[t] + 1, VR[t] + 3)
            for k in range(3): e(f"v_and_b32 v{VL[t]+ORD[t][k]}, v{vMV+t}, v{src[k]}\nv_xor_b32 v{VR[t]+ORD[t+1][k]}, v{VL[t]+ORD[t][k]}, v{src[k]}")
            e(f"v_mov_b32 v{VL[t]+ORD[t][3]}, 0")
        def smfma(b):
            for (kk, c, o) in ((KP, vCp, 0), (K, vCs, 4)):
                d = vr(S + 8 * b + o, 4)
                if b == 0: e(f"v_mfma_f32_16x16x16_bf16 {d}, {vr(kk,2)}, {vr(QO,2)}, {vr(c,4)}")
                elif b == 4: e(f"v_mfma_f32_16x16x16_bf16 {d}, {vr(kk+6,2)}, {vr(QO+14,2)}, {vr(c,4)}")
                else: e(f"v_mfma_f32_16x16x32_bf16 {d}, {vr(kk+2*b-2,4)}, {vr(QO+4*b-2,4)}, {vr(c,4)}")
            s0 = S + 8 * b
            for d in range(2): e(f"v_max3_f32 v{AB+2*b+d}, v{s0+2*d+1}, v{s0+4+2*d}, v{s0+5+2*d}")
        def mid2(mid, y, x):
            if rc1 and role == "L" and "rcp" in mid(x, x): e(mid(x, x)); e(f"v_mov_b32 v{y}, v{x}")
            else: e(mid(y, x)); e(mid(x, x))
        def red(op, src, mid):
            if len(src) == 2:
                x, y = src
                e(f"v_permlane16_swap_b32 v{x}, v{y}\n{op} v{x}, v{x}, v{y}\nv_mov_b32 v{y}, v{x}\nv_permlane32_swap_b32 v{x}, v{y}\n{op} v{x}, v{x}, v{y}")
                mid2(mid, y, x); e(f"v_permlane16_swap_b32 v{x}, v{y}")
            else:
                x, y, z, u = src
                e(f"v_permlane16_swap_b32 v{x}, v{y}\nv_permlane16_swap_b32 v{z}, v{u}\n{op} v{x}, v{x}, v{y}\n{op} v{z}, v{z}, v{u}")
                e(f"v_permlane32_swap_b32 v{x}, v{z}\n{op} v{x}, v{x}, v{z}")
                mid2(mid, z, x); e(f"v_permlane32_swap_b32 v{x}, v{z}\nv_mov_b32 v{y}, v{x}\nv_permlane16_swap_b32 v{x}, v{y}")
        def softmax(heads):
            n = len(heads); T = list(range(R_, R_ + (4 if n == 2 else 8), 2))
            hh = heads + heads[-1:] * (len(T) - n)
            pk = lambda k: (vr(T[k] & ~1, 2), T[k] & 1)
            for k, b in enumerate(hh): e(f"v_max_f32 v{T[k]}, v{AB+2*b}, v{AB+2*b+1}")
            red("v_max_f32", T, lambda d, x: f"v_mul_f32 v{d}, s{sCE}, v{x}")
            for k, b in enumerate(heads):
                r_, o = pk(k)
                e(f"v_pk_fma_f32 {vr(AB+2*b,2)}, {vr(AB+2*b,2)}, {sp(sCE)}, {r_} op_sel:[0,0,{o}] op_sel_hi:[1,1,{o}] neg_lo:[0,0,1] neg_hi:[0,0,1]")
                for d in range(2): e(f"v_exp_f32 v{AB+2*b+d}, v{AB+2*b+d}")
            for k, b in enumerate(hh): e(f"v_add_f32 v{T[k]}, v{AB+2*b}, v{AB+2*b+1}")
            red("v_add_f32", T, lambda d, x: f"v_rcp_f32 v{d}, v{x}")
            for k, b in enumerate(heads):
                r_, o = pk(k)
                e(f"v_pk_mul_f32 {vr(AB+2*b,2)}, {vr(AB+2*b,2)}, {r_} op_sel:[0,{o}] op_sel_hi:[1,{o}]")
                e(f"v_cvt_pk_bf16_f32 v{AB+2*b}, v{AB+2*b}, v{AB+2*b+1}")
                for k2, d in enumerate(ORD[b][:3]): e(f"v_and_b32 v{Pb[b]+d}, v{vMe+k2}, v{AB+2*b}")
                e(f"v_mov_b32 v{Pb[b]+ORD[b][3]}, 0")
        def pv(t, side, first):
            e(f"v_mfma_f32_16x16x32_bf16 {vr(Ot[t],4)}, {vr((VL,VR)[side][t],4)}, {vr(Pb[t+side],4)}, {0 if first else vr(Ot[t],4)}")
            if not first:
                for d in range(2): e(f"v_cvt_pk_bf16_f32 v{Od[t]+d}, v{Ot[t]+2*d}, v{Ot[t]+2*d+1}")
        flag = lambda k: f"buffer_store_dword v{vOne}, v{vFs}, {srd(sEx)}, 0 offen offset:{(256 if fl2 else 36)*k} {sm}"
        poll = f"buffer_load_dword v{PL}, v{vFp}, {srd(sEx)}, 0 offen sc1"
        def check(tag, mask, extra=""):
            a.e(f"v_cmp_ne_u32 vcc, 0, v{PL}")
            a(f"s_andn2_b32 {T0}, {mask}, vcc_lo\ns_cbranch_scc1 L_{tag}r{sfx}\nL_{tag}d{sfx}:")
            late.append(f"L_{tag}r{sfx}:\n{SPIN}L_{tag}d{sfx}\n{poll}\ns_waitcnt vmcnt(0)\n{extra}\nv_cmp_ne_u32 vcc, 0, v{PL}\ns_nop 0\ns_andn2_b32 {T0}, {mask}, vcc_lo\ns_cbranch_scc1 L_{tag}r{sfx}\ns_branch L_{tag}d{sfx}")
        def bread(n, em=None):
            n = [0, 9, 1, 2, 3, 4, 5, 6, 7, 8, 10, 11, 12, 13, 14, 15, 16, 17][n]
            q, hb = n % 9, n // 9
            for t in range(2):
                for h in range(2):
                    off = q * 8192 + ((2048, 4096), (0, 6144))[hb][h]
                    base = vWO + t
                    if off >= 32768: off -= 32768; base += 2
                    (em or a.e)(f"ds_read_b64_tr_b16 {vr(BB+8*n+4*t+2*h,2)}, v{base} offset:{off}")

        if role == "L": a(wowait)
        a("s_barrier")
        st("e2e")
        a.reset()
        a.vq.append({"T_wo"})
        if wide:
            for p in range(2):
                for dst, base, sec in ((Q, vT + 3, 0), (K, vT + 3, 1), (KP, vT + 4, 1)): e(f"ds_read_b128 {vr(dst+4*p,4)}, v{base} offset:{sec*2048 + p*1024}")
        else:
            for t in (0, 3, 1, 2): rd(Q + 2 * t, vXs, 0, t); rd(K + 2 * t, vXs, 1, t); rd(KP + 2 * t, vXp, 1, t)
        for t in range(4): maskq(t)
        for b in (0, 4, 1, 2, 3): smfma(b)
        e(f"buffer_store_dwordx2 {vr(AB,2)}, v{vP1a}, {srd(sD)}, 0 offen {sm} ; P1")
        e(f"buffer_store_dwordx2 {vr(AB+8,2)}, v{vP1b}, {srd(sD)}, 0 offen {sm} ; P1 w=p1")
        fast = sfx[1] == "f"
        p1l = f"buffer_load_dwordx2 {vr(RM,2)}, v{vP1l}, {srd(sD)}, 0 offen sc1\nbuffer_load_dwordx2 {vr(RM+2,2)}, v{vP1r}, {srd(sD)}, 0 offen sc1"
        if not fast: e(flag(0) + " ; F0 r=p1")
        if widev:
            for p, (te, to_) in enumerate(((1, 2), (0, 3))):
                e(f"ds_read_b128 {vr(VR[te],4)}, v{vT+3} offset:{4096 + p*1024}\nds_read_b128 {vr(VR[to_],4)}, v{vT+4} offset:{4096 + p*1024}")
        else:
            for t in range(4): rd(VR[t], vXs, 2, t); rd(VR[t] + 2, vXp, 2, t)
        for t in (2, 1, 3, 0): maskv(t)
        softmax([1, 2, 3])
        pv(1, 0, 1); pv(1, 1, 0); pv(2, 0, 1); pv(2, 1, 0)
        L.append((p1l if fast else poll) + " ; PO")
        if aout: e(f"buffer_store_dwordx4 {vr(Od[1],4)}, v{vOA}, {srd(sX)}, 0 offen {'' if fast else sm} ; SA w=sa")
        else: e(f"buffer_store_dwordx4 {vr(Od[1],4)}, v{vO}, {srd(sD)}, s{S_Q} offen {sm} ; SA w=sa")
        if fast and noack: e(flag(1) + " ; SF")
        pv(0, 1, 1); pv(3, 0, 1)
        flush({"; P1": 200, "; F0": 150, "; SA": 30, "; SF": 29}, pollback=pbC if role == "C" else pbL)
        stl()
        word = f"ds_read_b32 v{PL+1}, v{vFl} offset:4"
        if wo_pre == nlate: word = ""
        def wochk():
            if wo_pre == nlate: return
            a.e(f"v_cmp_gt_u32 vcc, 2, v{PL+1}")
            a(f"s_cbranch_vccnz L_wor{sfx}\nL_wod{sfx}:")
            late.append(f"L_wor{sfx}:\n{SPIN}L_wod{sfx}\n{word}\ns_waitcnt lgkmcnt(0)\nv_cmp_gt_u32 vcc, 2, v{PL+1}\ns_cbranch_vccnz L_wor{sfx}\ns_branch L_wod{sfx}")
        if role == "C" and pre1: a.e(word)
        if owa: a.e(f"ds_write_b128 v{vOw}, {vr(Od[1],4)}")
        ff = fast and fafirst and role == "C"
        if ff: a.e(flag(1) + " ; r=sa" + (f"\ns_setprio {prio}" if cback else ""))
        if fast:
            chk = f"v_max3_u32 v{PL}, v{RM}, v{RM+1}, v{RM+2}\nv_max_u32 v{PL}, v{PL}, v{RM+3}\nv_cmp_eq_u32 vcc, -1, v{PL}"
            a.e(chk)
            a(f"s_cbranch_vccnz L_c1r{sfx}\nL_c1d{sfx}:")
            rw = "s_waitcnt vmcnt(0)" if noack or ff else f"s_waitcnt vmcnt(2)\n{flag(1)}\ns_waitcnt vmcnt(1)"
            late.append(f"L_c1r{sfx}:\n{SPIN}L_c1d{sfx}\n{p1l}\n{rw}\n{chk}\ns_cbranch_vccnz L_c1r{sfx}\ns_branch L_c1d{sfx}")
            if not (noack or ff): e(flag(1) + " ; FA r=sa")
        else:
            check("c1", S_M1, flag(1))
            a.e(p1l)
            a.e(flag(1) + " ; r=sa")
        stl()
        if role == "C" and pre1:
            wochk()
            for n in range(pre1): bread(n, e)
        a.e(f"v_pk_add_f32 {vr(AB,2)}, {vr(AB,2)}, {vr(RM,2)}")
        stl()
        e(f"v_pk_add_f32 {vr(AB+8,2)}, {vr(AB+8,2)}, {vr(RM+2,2)}")
        softmax([0, 4])
        pv(0, 0, 0); pv(3, 1, 0)
        e(f"buffer_store_dwordx4 {vr(Od[0],4)}, v{vO}, {srd(sD)}, s{S_Q} offen offset:1024 {smB} ; w=sb")
        if role == "C" and not pre1: e(word)
        flush({"w=sb": 10}, fapos=faC if role == "C" else faL)
        stl()
        nb2 = fast and noack == 2
        if nb2: a.e(flag(2))
        ownw = (f"ds_write_b128 v{vOw}, {vr(Od[1],4)}\n" if not owa else "") + f"ds_write_b128 v{vOw}, {vr(Od[0],4)} offset:3072"
        if role == "L": a.e(ownw); a.lgkm0()
        if role == "L":
            if lk1: a("s_barrier")
            if not nb2: a.e(flag(2) + " ; r=sb")
            st("post")
            return late
        if not pre1: wochk()
        a.e(ownw)
        for n in range(pre1, pre1 + preb): bread(n)
        if not nb2: a.e(flag(2) + " ; r=sb")
        stl()
        for n in range(pre1 + preb, pre2): bread(n)
        nb = max(pre1 + preb, pre2)
        a.e(f"v_mov_b32 v{vFl}, {H0}")
        if cyield is not None: a(f"s_setprio {prio}")
        seen = set()
        def mm(f):
            kind, q, ti = frags[f]; n = kind * 9 + q; R = []
            assert [0, 9, 1, 2, 3, 4, 5, 6, 7, 8, 10, 11, 12, 13, 14, 15, 16, 17].index(n) < nb
            for t in range(2):
                d = vr(OA + 8 * ti + 4 * t, 4)
                R.append(f"v_mfma_f32_16x16x32_bf16 {d}, {vr(BB+8*n+4*t,4)}, {vr(AF+4*(f%NA),4)}, {d if ti in seen else 0}")
            seen.add(ti)
            return R
        def outp(ti):
            R = []
            if dso:
                o = OA + 8 * ti
                return [f"v_cvt_pk_bf16_f32 v{o+k}, v{o+2*k}, v{o+2*k+1}" for k in range(4)] + ["", f"v_permlane16_swap_b32 v{o}, v{o+2}", f"v_permlane16_swap_b32 v{o+1}, v{o+3}"]
            for t in range(2):
                o = OA + 8 * ti + 4 * t
                R.append(f"v_cvt_pk_bf16_f32 v{o}, v{o}, v{o+1}\nv_cvt_pk_bf16_f32 v{o+1}, v{o+2}, v{o+3}")
            for t in range(2): R.append(f"ds_write_b64 v{vT+2 if t else vTw}, {vr(OA+8*ti+4*t,2)} offset:{ti*1024*(reuse != 2)}")
            R.append(f"ds_read_b128 {vr(BB+4*ti,4)}, v{vTr} offset:{ti*1024*(reuse != 2)}")
            return R
        ostore = lambda ti: f"buffer_store_dwordx4 {vr(OA+8*ti if dso else BB+4*ti,4)}, v{vSt+ti}, {srd(sOut)}, 0 offen {out_mod}"
        MK = 108
        mrd = lambda k: f"ds_read_b32 v{MK}, v{vFl} offset:{64+4*k}"
        ard = lambda f: f"ds_read_b128 {vr(AF+4*(f%NA),4)}, v{(vR0,vR1,vT+1)[floc(f)[0]]} offset:{floc(f)[1]*1024}"
        a.lgkm0(); a("s_barrier"); stl(); st("p2")
        avail = cks[0]; ck = 1; nr = 0; stage = 0; tst = 0
        Bq = []
        for n in range(nb, 18): bread(n, Bq.append)
        nb0 = nb; nB = len(Bq)
        while nr < min(avail, LA): a.e(ard(nr)); nr += 1
        extra = []
        def step(g, force=False):
            nonlocal stage, tst, avail, ck
            if ck >= len(cks): return False
            if stage == 0 and (force or avail - g / 2 <= LAG + (d1 + d2) / 2):
                a.e(mrd(ck)); stage = 1; tst = g; return True
            if stage == 1 and (force or g >= tst + d1):
                a.e(f"v_cmp_eq_u32 vcc, 0, v{MK}"); stage = 2; tst = g; return True
            if stage == 2 and (force or g >= tst + d2):
                a(f"s_cbranch_vccnz L_m{ck}r{sfx}\nL_m{ck}d{sfx}:")
                late.append(f"L_m{ck}r{sfx}:\n{mrd(ck)}\n{SPIN}L_m{ck}d{sfx}\ns_waitcnt lgkmcnt(0)\nv_cmp_eq_u32 vcc, 0, v{MK}\ns_cbranch_vccnz L_m{ck}r{sfx}\ns_branch L_m{ck}d{sfx}")
                if ck in (1, len(cks) // 2, len(cks) - 1): stl()
                if ck > 1: st("p2")
                avail = cks[ck]; ck += 1; stage = 0; return True
            return False
        for f in range(54):
            while nr <= f:
                while nr >= avail: step(2 * f, True)
                a.e(ard(nr)); nr += 1
            nb = nb0 + (nB - len(Bq)) // 4
            if f == warf and (pre2 < 18 or reuse) and not nowar:
                assert avail <= warl <= 43 and (stage == 0 or cks[ck] <= warl or True) and (f >= (11 if dso else 18) if reuse else not Bq and not any(int(r[1:]) >= BB for q_ in a.lq for r in q_))
                a("s_barrier")
            if f == opos: extra = [y for x in (outp(0) + [ostore(0)] + outp(1) + [ostore(1)] if dso else outp(0) + outp(1) + ["", "", ostore(0), "", ostore(1)]) for y in x.split("\n")]
            if aout and f == 52:
                assert ck == len(cks)
                a.e(mrd(len(cks)))
            for h, m in enumerate(mm(f)):
                n0 = len(a.l)
                a.e(m)
                g = 2 * f + h
                slots = 2 if h == 0 else 1
                while slots > 0:
                    if step(g): pass
                    elif nr < min(avail, f + LA, 54): a.e(ard(nr)); nr += 1
                    elif Bq: a.e(Bq.pop(0))
                    elif extra and not (aout and "store" in extra[0]):
                        x = extra.pop(0); a.e(x)
                        if "write" in x or "swap" in x: slots -= 1
                    else: break
                    slots -= 1
        assert ck == len(cks) and not Bq
        o2 = outp(2)
        if aout:
            kd = len(cks)
            sts = [y for y in extra if "store" in y]; assert len(sts) == 2
            for x in [y for y in extra if "store" not in y]: a.e(x)
            a.e(f"v_cmp_eq_u32 vcc, 0, v{MK}")
            for x in o2[:2]: a.e(x)
            a(f"s_cbranch_vccnz L_mdr{sfx}\nL_mdd{sfx}:")
            late.append(f"L_mdr{sfx}:\n{mrd(kd)}\n{SPIN}L_mdd{sfx}\ns_waitcnt lgkmcnt(0)\nv_cmp_eq_u32 vcc, 0, v{MK}\ns_cbranch_vccnz L_mdr{sfx}\ns_branch L_mdd{sfx}")
            extra = sts; o2 = o2[2:]
        if dso:
            for x in extra: a.e(x)
            extra = []
        for x in [y for y in extra if "store" not in y] + [y for y in extra if "store" in y][:-1] + o2 + [y for y in extra if "store" in y][-1:]: a.e(x)
        a.e(ostore(2))
        if stamp:
            st("post"); st("p2"); a("s_waitcnt vmcnt(0)"); st("post"); st("e2e")
        return late
    late = post("C", "Cf", st_mod)
    a("L_fin:")
    if stamp:
        a(f"s_waitcnt lgkmcnt(0)\ns_lshl_b32 {T0}, s2, 3\ns_add_u32 {T0}, {T0}, {S_W}\ns_lshl_b32 {T0}, {T0}, 7\ns_add_u32 {T0}, {T0}, {STAMP_OFF}")
        a(f"s_add_u32 s{sK2}, s{sK2+2}, {T0}\ns_addc_u32 s{sK2+1}, s{sK2+3}, 0\nv_mov_b32 v1, 0")
        for k in range(NST): a(f"v_mov_b32 v2, s{S_ST+2*k}\nglobal_store_dword v1, v2, {sp(sK2)} offset:{4*k}")
    a("L_end:\ns_endpgm")
    lateCf = late
    a((".p2align 6" if cpad is None or not lal else ".p2align 12") + "\nL_attnL:")
    lateL = decide("attnL")
    for role, sfx, sm in (("L", "Lf", st_mod), ("L", "Ls", "sc1"), ("C", "Cs", "sc1")):
        if sfx != "Lf": a(f"L_attn{sfx}:")
        late = post(role, sfx, sm)
        a("s_branch L_fin" if stamp and (role == "C" or sset == "b1" or stampL) else "s_endpgm")
        for x in (late + lateCf if sfx == "Lf" else late): a(x)
    a(lateC); a(lateL); a(".fill 512, 4, 0xbf800000\nL_last:")
    if fex:
        L2 = []
        for x in a.l:
            if f"buffer_store_dword v{vOne}, v{vFs}," in x:
                if L2[-1].strip().startswith("s_waitcnt"): L2.insert(len(L2) - 1, "    s_mov_b64 exec, 1")
                else: L2.append("    s_mov_b64 exec, 1")
                L2 += [x, "    s_mov_b64 exec, -1"]
            else: L2.append(x)
        a.l = L2
    lines, tot = hz.fix(a.l)
    lines = [x.split(";")[0].rstrip() for x in lines]
    body = "\n".join(lines) + "\n"
    return kernel_file(body, 256, 512, 163840, vgpr=256, sgpr=102)

def labels(asm):
    import subprocess, os, re
    p = f"_lab{os.getpid()}"
    open(p + ".s", "w").write(asm)
    subprocess.run(["clang", "-x", "assembler", "-target", "amdgcn-amd-amdhsa", "-mcpu=gfx950", "-c", p + ".s", "-o", p + ".o"], check=True)
    out = subprocess.run(["llvm-readelf", "-s", p + ".o"], capture_output=True, text=True).stdout
    return {m.group(2): int(m.group(1), 16) for m in re.finditer(r"\d+: ([0-9a-f]{16}) .* (L_\w+)$", out, re.M)}
def gen(page=1, pshift=0, **kw):
    if not page: return gen0(**kw)
    L = labels(gen0(**kw))
    if "L_tramp" in L: kw["tpad"] = max(0, (512 - L["L_tramp"]) // 4)
    cpad = (pshift - (L["L_postC"] - L["L_comp"])) % 4096
    L = labels(gen0(cpad=cpad, **kw))
    npf = -(-L["L_attnLs"] // 2048)
    assert npf * 2048 + 4096 <= L["L_last"]
    return gen0(cpad=cpad, npf=npf, **kw)

STAMPSETS = [("comp", slice(0, 4), 14), ("ld45", slice(4, 6), 14), ("ld67", slice(6, 8), 14)]
def workers(w): return w[:, :216], w[:, 216:]
if __name__ == "__main__":
    open("k18.s", "w").write(gen())
    open("k18s.s", "w").write(gen(stamp=True))
```

```python
import sys, math, struct
from asmlib import *
import hz
from gen1 import W, vr

SLOT = 36864
WOB = 89088
XB = 0
R0B = SLOT
SPB = 2 * SLOT
slot_of = lambda c: (c + 2) % 3
FL = 163840 - 256
RSZ = 12288
FOFF = 9 * RSZ
GSZ = FOFF + 1024
STAMP_OFF = 128 << 20
CEXP = struct.unpack("<I", struct.pack("<f", 18 ** -0.5 * math.log2(math.e)))[0]

sX, sWq, sWo, sOut, sEx = 4, 8, 12, 16, 20
sK2 = 24
S_XCD, S_SLOT, S_RGL, S_J, S_W, S_GI, S_ROW0 = "s28", "s29", "s30", "s31", "s32", "s33", "s34"
S_C, S_A, S_B, S_LB, S_COL, S_SP = "s35", "s36", "s37", "s38", "s39", "s40"
H0 = "s41"
T0, T1, T2, T3 = "s42", "s43", "s44", "s45"
sCE = 46
S_Q = 48
S_M1 = "s57"; S_FV = "s3"
sM = 58
sD = 64
SLOWOFF = 4 << 20
SLOW2 = 8 << 20
S_DM = 's62'
vOA = 25; vAo = 250; vDs, vDp = 253, 254
S_ST = 74
NST = 14
def srd(b): return f"s[{b}:{b+3}]"
def sp(b): return f"s[{b}:{b+1}]"
SPIN = f"s_add_u32 {S_SP}, {S_SP}, 1\ns_cmp_ge_u32 {S_SP}, 0x40000\ns_cbranch_scc1 "

vL = 0; vOne = 1
vCs, vCp = 2, 6
vMe = 10
vM, vMV = 13, 21
vXs, vXp, vP1a, vP1b, vP1l, vP1r, vO, vFs, vFp = 25, 26, 27, 28, 29, 30, 31, 32, 33
vWO = 34
vTw, vTr, vSt = 38, 39, 40
vR0, vR1, vFl, vOw = 43, 44, 45, 51
vT = 46
vA, vB, vWoG = 240, 243, 245
vRA, vRB, vXw = 52, 56, 58
ACC = 60; FR = 132

def lanemask(f):
    m = 0
    for l in range(64):
        if f(l): m |= 1 << l
    return m

def gen0(cpad=None, npf=10, cw2=1, early=0, xk=2, xpos2=46, noack=0, aout=2, cdef={0: 32, 2: 99}, prio0=1, sent=2, Db0=None, cpoll=48, gstart=44, lskip=0, p1C=200, p1L=100, dfC=0, dfL=0, swc=1, ldl=22, saB=30, a4=0, pdep=1, pex=2, psl=0, fex=0, fl2=0, dex=1, no54=1, p1st=1, tramp=0, tpad=0, wrot=1, ntall=0, late67=1, dpos=(54, 51), wb=None, widev=1, cyield=None, cback=0, fafirst=1, lup=None, dbgpause=None, dbgpre=0, oord=1, wsteps=(2, 2, 2), epts=(4, 16), cwk=6, otouch=0, lal=1, D=10, PB=10, fine=(0,), cx=1, help="HoE", stamp=False, sset="post", clk=False, force_sc1=False, out_mod="nt", st_mod="nt",
        swap=1, prio=1, hs=(32, 44, 66, 74), pre1=0, pre2=10, cks=(6, 10, 14, 18, 22, 26, 30, 34, 38, 42, 46, 50, 54), ckpos=(21,), ppos=(12, 21, 37), sbar=4, mk=1, nochk=0, nowar=0, border=0, dso=0, PB2=12, cw=1, rc1=1, hsw=1, hpos=None, lat=((1,3,3,2),(2,3,3,1),(1,2,3,3)), LA=6, d1=4, d2=2, reuse=2, warf=24, warl=43, bev=2, owa=0, mlead=1, WL=4, stampL=0, faC=10, faL=10, lk1=1, preb=6, opos=48, wide=1, LAG=3, vlC=70, vlL=25, pbC=-1, pbL=60, LEAD=1, wo_pre=4, D3=7, touch=0, wotouch=2, fbat=-1, cj=0, etouch=0, lprio=0, Db=9, secmaj=0, hearly=0, spread=99, nomfma=False, noread=False):
    a = W()
    ns = [0]
    def st(k="any"):
        if stamp and (k == sset or (k == "any" and (sset != "e2e" or ns[0] == 0))) and ns[0] < NST:
            a(("s_memtime" if clk else "s_memrealtime") + f" s[{S_ST+2*ns[0]}:{S_ST+2*ns[0]+1}]")
            ns[0] += 1
            if sset == "e2e":
                a(f"s_memtime s[{S_ST+2*ns[0]}:{S_ST+2*ns[0]+1}]"); ns[0] += 1
    def stl(k="post"):
        if stamp and k == sset:
            st()
    t0, t1, t2, t3, t4 = range(vT, vT + 5)
    st()
    a(f"s_load_dwordx2 {sp(sX)}, s[0:1], 0\ns_load_dwordx2 {sp(sWq)}, s[0:1], 8")
    CB = S_XCD if cx else '0'
    assert swap and not cj
    a(f"s_getpc_b64 {sp(sCE)}\ns_lshr_b32 {S_SLOT}, s2, 3\ns_and_b32 {T0}, {S_SLOT}, 15\ns_mul_i32 {T0}, {T0}, {npf}")
    a(f"v_subrev_u32 v3, 256, v0\nv_add_lshl_u32 v2, v3, {T0}, 7\nv_cmp_gt_u32 vcc, {npf}, v3")
    a(f"v_readfirstlane_b32 {S_LB}, v0\ns_and_saveexec_b64 {sp(sM)}, vcc\ns_cbranch_execz L_nopf")
    a(f"global_load_dword v208, v2, {sp(sCE)}\nL_nopf:\ns_mov_b64 exec, -1")
    a(f"s_load_dwordx4 s[{sWo}:{sWo+3}], s[0:1], 16\ns_load_dwordx4 s[{sK2}:{sK2+3}], s[0:1], 32")
    a(f"s_lshr_b32 {S_W}, {S_LB}, 6\ns_and_b32 {S_XCD}, s2, 7")
    a(f"s_mov_b32 s{sX+2}, 2359296\ns_mov_b32 s{sX+3}, 0x20000\ns_mov_b32 s{sWq+2}, 1990656\ns_mov_b32 s{sWq+3}, s{sX+3}")
    a(f"s_cmp_ge_u32 {S_SLOT}, 27\ns_cbranch_scc1 L_help")
    a(f"s_mul_i32 {S_RGL}, {S_SLOT}, 57\ns_lshr_b32 {S_RGL}, {S_RGL}, 9\ns_mul_i32 {T0}, {S_RGL}, 9\ns_sub_u32 {S_J}, {S_SLOT}, {T0}")
    a(f"s_lshr_b32 {S_GI}, {S_XCD}, 1\ns_mul_i32 {S_GI}, {S_GI}, 3\ns_add_u32 {S_GI}, {S_GI}, {S_RGL}")
    a(f"s_mul_i32 {S_ROW0}, {S_GI}, 170\ns_and_b32 {T0}, {S_XCD}, 1\ns_add_u32 {S_ROW0}, {S_ROW0}, {T0}")
    if swap: a(f"s_xor_b32 {S_W}, {S_W}, 4")
    if tramp: a(f"s_cbranch_scc0 L_tramp")
    a(f"s_cmp_lt_u32 {S_W}, 4\ns_cbranch_scc1 L_comp")

    G67 = []
    def setup_groups(role):
        G = []
        g = G.append
        g(f"s_mov_b64 {sp(sOut)}, {sp(sWo+2)}\ns_mov_b32 s{sWo+2}, 663552\ns_mov_b32 s{sWo+3}, 0x20000\ns_mov_b32 s{sOut+2}, 2359296\ns_mov_b32 s{sOut+3}, 0x20000")
        g(f"s_mul_i32 {T0}, {S_XCD}, 3\ns_add_u32 {T0}, {T0}, {S_RGL}\ns_mul_i32 {T0}, {T0}, {GSZ}\ns_add_u32 s{sEx}, s{sK2+2}, {T0}\ns_addc_u32 s{sEx+1}, s{sK2+3}, 0")
        g(f"s_mov_b32 s{sEx+2}, {GSZ}\ns_mov_b32 s{sEx+3}, 0x20000\ns_mov_b32 {S_SP}, 0\ns_mov_b32 s{sCE}, {CEXP}\ns_mov_b32 s{sCE+1}, {CEXP}")
        g(f"s_mov_b64 {sp(sD)}, {sp(sEx)}\ns_mov_b32 s{sD+2}, {FOFF}\ns_mov_b32 s{sD+3}, 0x20000")
        g(f"s_mul_i32 s{S_Q}, {S_J}, {RSZ}\ns_lshl_b32 {S_M1}, 5, {S_J}\ns_bfe_u32 {S_M1}, {S_M1}, 0x90001")
        g(f"s_getreg_b32 {T0}, hwreg(HW_REG_XCC_ID, 0, 4)\ns_mul_i32 {S_FV}, {T0}, {T0}\ns_lshl_b32 {S_FV}, {S_FV}, 8\ns_add_u32 {S_FV}, {S_FV}, {T0}\ns_lshl_b32 {S_FV}, {S_FV}, 8\ns_add_u32 {S_FV}, {S_FV}, 1")
        if role == "L":
            g(f"v_lshlrev_b32 v{vWoG+4}, 20, v{vL}\nv_add_u32 v{vWoG+4}, {FOFF+768}, v{vWoG+4}")
            for q in range(1, 9):
                g(f"s_add_u32 s{S_Q+q}, s{S_Q+q-1}, {RSZ}\ns_cmp_eq_u32 s{S_Q+q}, {FOFF}\ns_cselect_b32 s{S_Q+q}, 0, s{S_Q+q}")
        g(f"v_mov_b32 v{t0}, 0xff800000\nv_mov_b32 v{t1}, 0xffff\nv_mov_b32 v{vOne}, 1\nv_mov_b32 v{vCp}, 0\nv_mov_b32 v{vCp+2}, 0")
        setv = lambda m: f"s_mov_b32 vcc_lo, {m & 0xffffffff}\ns_mov_b32 vcc_hi, {m >> 32}\n"
        for d in range(2):
            le = lambda l: 2 * (l >> 4) + d <= ((l & 15) >> 1)
            e = lambda l: l & 1
            for k, (f, c) in enumerate(((lambda l: le(l) != e(l), vCs + 2 * d), (lambda l: le(l) and e(l), vCs + 2 * d + 1), (lambda l: not le(l) and not e(l), vCp + 2 * d + 1))):
                x = setv(lanemask(f))
                if k == 2: x += f"s_cmp_eq_u32 {S_W}, 0\ns_cselect_b64 vcc, 0, vcc\n"
                x += f"v_cndmask_b32 v{c}, v{t0}, 0, vcc\n"
                if d == 0: x += f"v_cndmask_b32 v{vMe+k}, 0, v{t1}, vcc"
                else: x += f"v_cndmask_b32 v{t2}, 0, v{t1}, vcc\nv_lshl_or_b32 v{vMe+k}, v{t2}, 16, v{vMe+k}"
                g(x)
        g(f"v_lshrrev_b32 v{t0}, 4, v{vL}\nv_lshlrev_b32 v{t1}, 1, v{t0}\nv_bfe_u32 v{t2}, v{vL}, 1, 3\ns_mul_i32 {T0}, {S_J}, {4*57}\ns_lshr_b32 {T0}, {T0}, 9\ns_mul_i32 {T0}, {T0}, 9\ns_lshl_b32 {T1}, {S_J}, 2\ns_sub_u32 {T1}, {T1}, {T0}")
        for t in range(4):
            g(f"v_subrev_u32 v{t3}, {T1}, v{t1}\nv_ashrrev_i32 v{vM+2*t}, 31, v{t3}\nv_add_u32 v{t3}, 1, v{t3}\nv_ashrrev_i32 v{vM+2*t+1}, 31, v{t3}")
            g(f"v_subrev_u32 v{t3}, {T1}, v{t2}\nv_ashrrev_i32 v{vMV+t}, 31, v{t3}" + (f"\ns_add_u32 {T1}, {T1}, 1\ns_cmp_eq_u32 {T1}, 9\ns_cselect_b32 {T1}, 0, {T1}" if t < 3 else ""))
        g(f"s_mul_i32 {T0}, {S_W}, 6144\ns_add_u32 {T0}, {T0}, {XB}\nv_lshl_add_u32 v{vXs}, v{vL}, 3, {T0}\ns_sub_u32 {T0}, {T0}, 6144\ns_max_i32 {T0}, {T0}, {XB}\nv_lshl_add_u32 v{vXp}, v{vL}, 3, {T0}")
        g(f"s_lshl_b32 {T2}, {S_W}, 11\nv_lshl_add_u32 v{vO}, v{vL}, 4, {T2}\ns_add_u32 {T0}, {T2}, s{S_Q}\ns_add_u32 {T0}, {T0}, 1024")
        if aout == 2 and role == "C":
            NB_, HF_ = 128, 9216
            g(f"s_add_u32 {T0}, {S_ROW0}, 112\ns_mul_i32 {T0}, {T0}, 1152\ns_mul_i32 {T1}, {S_W}, 18432\ns_add_u32 {T0}, {T0}, {T1}\ns_lshl_b32 {T1}, {S_J}, 7\ns_add_u32 {T0}, {T0}, {T1}\nv_mul_u32_u24 v{t3}, {288-16}, v{t0}\nv_add_u32 v{t3}, v{t3}, v{vL}")
            lp = t3
        else: NB_, HF_, lp = RSZ, 512, vL
        g(f"s_add_u32 {T1}, {T0}, {(HF_-NB_) & 0xffffffff}\ns_cmp_eq_u32 {S_J}, 0\ns_cselect_b32 {T1}, 0x40000000, {T1}\ns_cselect_b32 {T3}, 0x40000000, {T0}\nv_lshl_add_u32 v{vP1a}, v{lp}, 3, {T1}\nv_lshl_add_u32 v{vP1l}, v{lp}, 3, {T3}")
        g(f"s_add_u32 {T1}, {T0}, {NB_}\ns_add_u32 {T3}, {T0}, {HF_}\ns_cmp_eq_u32 {S_J}, 8\ns_cselect_b32 {T1}, 0x40000000, {T1}\ns_cselect_b32 {T3}, 0x40000000, {T3}\nv_lshl_add_u32 v{vP1b}, v{lp}, 3, {T1}\nv_lshl_add_u32 v{vP1r}, v{lp}, 3, {T3}")
        if not fl2: g(f"s_lshl_b32 {T0}, {S_W}, 7")
        elif role == "C": g(f"s_lshr_b32 {T0}, {S_W}, 1\ns_lshl_b32 {T0}, {T0}, 7\ns_and_b32 {T1}, {S_W}, 1\ns_mul_i32 {T1}, {T1}, 36\ns_add_u32 {T0}, {T0}, {T1}")
        else: g(f"s_and_b32 {T0}, {S_W}, 1\ns_lshl_b32 {T0}, {T0}, 7\ns_add_u32 {T0}, {T0}, 72")
        g(f"s_add_u32 {T0}, {T0}, {FOFF}\nv_and_b32 v{t1}, 15, v{vL}\nv_lshl_add_u32 v{vFp}, v{t1}, 2, {T0}\ns_lshl_b32 {T1}, {S_J}, 2\ns_add_u32 {T0}, {T0}, {T1}\nv_lshl_add_u32 v{vFs}, v{vL}, 20, {T0}")
        if role == "C":
            g(f"s_lshr_b32 {T2}, {S_W}, 1\ns_and_b32 {T3}, {S_W}, 1\ns_lshl_b32 {T0}, {T3}, 1")
            g(f"v_lshrrev_b32 v{t2}, 2, v{vL}\nv_lshlrev_b32 v{t3}, 7, v{t2}\nv_bfe_u32 v{t4}, v{vL}, 3, 2\nv_xor_b32 v{t4}, {T0}, v{t4}\nv_lshl_add_u32 v{t3}, v{t4}, 5, v{t3}")
            g(f"v_and_b32 v{t4}, 3, v{vL}\nv_lshl_add_u32 v{t3}, v{t4}, 3, v{t3}\nv_add_u32 v{vWO}, {WOB}, v{t3}\nv_xor_b32 v{vWO+1}, 32, v{vWO}\nv_add_u32 v{vWO+2}, 32768, v{vWO}\nv_add_u32 v{vWO+3}, 32768, v{vWO+1}")
            g(f"s_mul_i32 {T0}, {T2}, 18432\ns_add_u32 {T0}, {T0}, {R0B}\nv_lshl_add_u32 v{vR0}, v{vL}, 4, {T0}\ns_lshl_b32 {T1}, {T2}, 10\ns_add_u32 {T1}, {T1}, {XB}\nv_lshl_add_u32 v{vR1}, v{vL}, 4, {T1}")
            if not dso:
                g(f"s_mul_i32 {T1}, {T3}, 3072\ns_add_u32 {T0}, {T0}, {T1}\ns_add_u32 {T0}, {T0}, {(0 if reuse else WOB) + 11264}" if reuse != 2 else f"s_lshl_b32 {T0}, {S_W}, 10\ns_add_u32 {T0}, {T0}, {WOB + 5*8192 + 2048}")
                g(f"v_lshrrev_b32 v{t3}, 4, v{vL}\nv_xor_b32 v{t3}, v{t3}, v{vL}\nv_and_b32 v{t3}, 6, v{t3}\nv_and_b32 v{t0}, 1, v{t0}\nv_or_b32 v{t3}, v{t3}, v{t0}\nv_lshl_add_u32 v{t3}, v{t3}, 3, {T0}\nv_lshl_add_u32 v{vTw}, v{t1}, 6, v{t3}")
                g(f"v_lshrrev_b32 v{t3}, 3, v{vL}\nv_xor_b32 v{t0}, v{t3}, v{vL}\nv_and_b32 v{t0}, 3, v{t0}\nv_lshl_add_u32 v{t0}, v{t0}, 4, {T0}\nv_lshl_add_u32 v{vTr}, v{t2}, 6, v{t0}")
                g(f"v_and_b32 v{t0}, 4, v{vL}\nv_lshl_add_u32 v{t3}, v{t0}, 1, v{t3}\ns_lshl_b32 {T0}, {S_J}, 7\ns_lshl_b32 {T1}, {T3}, 6\ns_add_u32 {T0}, {T0}, {T1}\nv_lshl_add_u32 v{t4}, v{t4}, 4, {T0}")
            else:
                g(f"v_bfe_u32 v{t3}, v{vL}, 1, 3\nv_and_b32 v{t0}, 1, v{vL}\nv_lshl_add_u32 v{t3}, v{t0}, 3, v{t3}\ns_lshl_b32 {T0}, {S_J}, 7\ns_lshl_b32 {T1}, {T3}, 6\ns_add_u32 {T0}, {T0}, {T1}")
                g(f"v_lshrrev_b32 v{t4}, 5, v{vL}\nv_lshl_add_u32 v{t4}, v{t4}, 4, {T0}\nv_and_b32 v{t0}, 16, v{vL}\nv_lshl_add_u32 v{t4}, v{t0}, 1, v{t4}")
            g(f"s_cmp_eq_u32 {S_GI}, 0\ns_cselect_b32 {T0}, 0, 7\ns_sub_u32 {T1}, 92, {T0}\nv_bfrev_b32 v{t2}, 1")
            for k in range(3):
                g((f"s_lshl_b32 {T3}, {T2}, 5", f"s_add_u32 {T3}, {T3}, 16", f"s_lshl_b32 {T3}, {T2}, 4\ns_add_u32 {T3}, {T3}, 64")[k] +
                  f"\nv_add_u32 v{t0}, {T3}, v{t3}\nv_subrev_u32 v{t1}, {T0}, v{t0}\nv_cmp_gt_u32 vcc, {T1}, v{t1}\nv_lshl_add_u32 v{t0}, v{t0}, 1, {S_ROW0}\nv_mul_u32_u24 v{t0}, 1152, v{t0}\nv_add_u32 v{t0}, v{t0}, v{t4}\nv_cndmask_b32 v{vSt+k}, v{t2}, v{t0}, vcc")
        else:
            g(f"s_and_b32 {T2}, {S_W}, 1")
            if late67: g = G67.append
            if not fl2:
                g(f"s_and_b32 {T2}, {S_W}, 1\nv_mul_u32_u24 v{t0}, 57, v{vL}\nv_lshrrev_b32 v{t0}, 9, v{t0}\nv_mul_u32_u24 v{t1}, 9, v{t0}\nv_sub_u32 v{t1}, v{vL}, v{t1}")
                g(f"v_mul_u32_u24 v{t2}, 11, v{t0}\nv_lshrrev_b32 v{t2}, 5, v{t2}\nv_mul_u32_u24 v{t3}, 3, v{t2}\nv_sub_u32 v{t3}, v{t0}, v{t3}")
                g(f"v_cmp_gt_u32 vcc, 54, v{vL}\nv_mad_u32_u24 v{t2}, v{t2}, 9, v{t1}\nv_mov_b32 v{t0}, {S_J}\nv_cndmask_b32 v{t3}, v{t1}, v{t3}, vcc\nv_cndmask_b32 v{t2}, v{t0}, v{t2}, vcc\nv_cndmask_b32 v{t0}, 1, 0, vcc\nv_xor_b32 v{t0}, {T2}, v{t0}")
                g(f"v_cmp_eq_u32 vcc, 2, v{t3}\nv_lshl_add_u32 v{t1}, v{t0}, 1, v{t3}\nv_add_u32 v{t0}, 4, v{t0}\nv_cndmask_b32 v{t1}, v{t1}, v{t0}, vcc\nv_lshlrev_b32 v{t1}, 7, v{t1}\nv_lshl_add_u32 v{t1}, v{t2}, 2, v{t1}")
            else:
                assert no54
                g(f"s_and_b32 {T2}, {S_W}, 1\nv_cmp_lt_u32 vcc, 26, v{vL}\ns_lshl_b32 {T0}, {T2}, 7\ns_add_u32 {T0}, {T0}, {256-36}\nv_cndmask_b32 v{t1}, 0, 37, vcc\nv_add_lshl_u32 v{t1}, v{t1}, v{vL}, 2\nv_add_u32 v{t1}, {T0}, v{t1}")
            g(f"v_cmp_gt_u32 vcc, 57, v{vL}\nv_add_u32 v{t1}, {FOFF+36}, v{t1}\ns_lshl_b32 {T0}, {T2}, 12\nv_cndmask_b32 v{vTw}, -16, v{t1}, vcc\nv_lshl_add_u32 v{vR0}, v{vL}, 4, {T0}\ns_lshl_b32 {T0}, {T2}, 11\ns_add_u32 {T0}, {T0}, 8192\nv_lshl_add_u32 v{vR1}, v{vL}, 4, {T0}")
        g = G.append
        if role == "C": g(f"s_and_b32 {T0}, {S_W}, 1\ns_lshl_b32 {T0}, {T0}, 10\nv_add_u32 v{vOw}, {T0}, v{vR0}")
        else: g(f"s_mul_i32 {T0}, {T2}, 18432\ns_add_u32 {T0}, {T0}, {R0B + 2048}\nv_lshl_add_u32 v{vOw}, v{vL}, 4, {T0}")
        if role == "C": g(f"v_add_u32 v{vT+1}, {SPB-XB}, v{vR1}\nv_xor_b32 v{vT+2}, 32, v{vTw}\ns_lshr_b32 {T0}, {S_W}, 1\ns_lshl_b32 {T0}, {T0}, 6\ns_add_u32 {H0}, {T0}, {FL}")
        g(f"v_lshl_add_u32 v{vT+3}, v{vL}, 3, v{vXs}\nv_lshl_add_u32 v{vT+4}, v{vL}, 3, v{vXp}")
        if aout:
            assert widev and wide
            g(f"v_lshrrev_b32 v{t0}, 3, v{vL}\nv_mul_u32_u24 v{t0}, 2304, v{t0}\nv_and_b32 v{vXp}, 7, v{vL}\nv_lshl_add_u32 v{vXp}, v{vXp}, 4, v{t0}\ns_add_u32 {T0}, {S_ROW0}, 16\ns_mul_i32 {T0}, {T0}, 1152\nv_add_u32 v{vXp}, {T0}, v{vXp}")
            g(f"s_mul_i32 {T0}, {S_W}, 18432\ns_lshl_b32 {T1}, {S_J}, 7\ns_add_u32 {T0}, {T0}, {T1}\nv_add_u32 v{vOA}, {T0}, v{vXp}")
            if role == "C": g(f"s_mov_b64 {sp(sX)}, {sp(sOut)}\nv_add_u32 v{vXp}, 110592, v{vOA}")
            else:
                g(f"s_mov_b32 {S_DM}, 0x3ffff")
                if late67: g = G67.append
                g(f"s_mul_i32 {T0}, {T2}, 36864\nv_add_u32 v{vAo}, {T0}, v{vXp}\nv_add_u32 v{vAo+1}, 18432, v{vAo}\ns_mul_i32 {T0}, {T2}, 18432\ns_add_u32 {T0}, {T0}, 73728\nv_add_u32 v{vAo+2}, {T0}, v{vXp}")
                g(f"s_lshl_b32 {T0}, {S_J}, 1\ns_add_u32 {T0}, {T0}, {T2}\ns_lshl_b32 {T0}, {T0}, 2\ns_add_u32 {T0}, {T0}, {FOFF+896}\nv_lshl_add_u32 v{vDs}, v{vL}, 20, {T0}\nv_and_b32 v{vDp}, 31, v{vL}\nv_lshlrev_b32 v{vDp}, 2, v{vDp}\nv_add_u32 v{vDp}, {FOFF+896}, v{vDp}")
        return G

    def decide(tag):
        a(f"s_cmp_lg_u32 {S_COL}, {S_FV}\ns_cbranch_scc1 L_{tag}q\nL_{tag}f:")
        return (f"L_{tag}q:\ns_load_dword {S_COL}, {sp(sEx)}, {FOFF+768} glc\ns_waitcnt lgkmcnt(0)\ns_cmp_eq_u32 {S_COL}, {S_FV}\ns_cbranch_scc1 L_{tag}f\n"
                f"s_add_u32 s{sD}, s{sD}, {SLOWOFF}\ns_addc_u32 s{sD+1}, s{sD+1}, 0\n" +
                (f"s_add_u32 s{sX}, s{sK2+2}, {SLOW2}\ns_addc_u32 s{sX+1}, s{sK2+3}, 0\ns_mov_b32 {S_DM}, 0\n" if aout else "") + f"s_branch L_{tag}s")
    bars = []
    for c in range(9):
        if c in fine: bars += [(9 * c + 6, 2 * c), (9 * c + 9, 2 * c + 1)]
        else: bars += [(9 * c + 9, 2 * c)]
    barsteps = {k for _, k in bars}

    a(f"s_lshl_b32 {S_LB}, {S_LB}, 4\nv_lshrrev_b32 v{t3}, 3, v0\nv_bfe_u32 v{t2}, v0, 4, 3\nv_and_or_b32 v{t1}, v0, 8, v{t2}\nv_and_or_b32 v{t1}, v{t3}, 16, v{t1}\nv_and_b32 v{t0}, 4, v{t2}")
    a(f"v_xor_b32 v{t2}, v{t2}, v0\nv_and_b32 v{t2}, 7, v{t2}\nv_cmp_gt_u32 vcc, 28, v{t1}\nv_lshl_add_u32 v{t1}, v{t1}, 1, {S_ROW0}\nv_mul_u32_u24 v{t1}, 1152, v{t1}")
    a(f"v_lshl_add_u32 v{vA}, v{t2}, 4, v{t1}\nv_add_u32 v{vA+1}, 73728, v{vA}\nv_add_u32 v{vA+2}, 147456, v{vA}\nv_cndmask_b32 v{vA+2}, -16, v{vA+2}, vcc")
    a(f"v_and_or_b32 v{t0}, v{t3}, 2, v{t0}\nv_xor_b32 v{t0}, v{t0}, v0\nv_and_b32 v{t0}, 7, v{t0}\ns_lshl_b32 {T2}, {S_J}, 7\nv_lshl_add_u32 v{t0}, v{t0}, 4, {T2}")
    a(f"s_and_b32 {T0}, {S_RGL}, {hsw}\ns_lshl_b32 {T0}, {T0}, 5\nv_or_b32 v{t4}, {T0}, v{t3}\ns_movk_i32 {T1}, 3456\nv_mad_u32_u24 v{vB}, v{t4}, {T1}, v{t0}\nv_xor_b32 v{t4}, 32, v{t4}\nv_mad_u32_u24 v{vB+1}, v{t4}, {T1}, v{t0}")
    if False: pass
    elif lat:
        order = []
        for gs in lat:
            for r_ in range(3):
                o = []; b_ = 0
                for n_ in gs:
                    o += [b_ + (p + r_ * max(1, (n_ + 1) // 3)) % n_ for p in range(n_)]; b_ += n_
                assert sorted(o) == list(range(9)); order.append(o)
        s68 = f"s_mul_i32 s68, {S_J}, 11\ns_lshr_b32 s68, s68, 5\ns_mul_i32 s68, s68, 3\ns_sub_u32 s68, {S_J}, s68\ns_mul_i32 s68, s68, 3\ns_add_u32 s68, s68, {S_RGL}"
        if max(o[0] for o in order) <= 1:
            m_ = sum(order[(sl_ % 3) * 3 + sl_ // 9][0] << sl_ for sl_ in range(27))
            a(f"s_bitcmp1_b32 {m_}, {S_SLOT}\ns_addc_u32 {S_C}, {CB}, 0")
        else:
            first = sum(o[0] << (2 * k) for k, o in enumerate(order))
            a(s68); s68 = ""
            a(f"s_lshl_b32 {S_C}, s68, 1\ns_lshr_b32 {S_C}, {first}, {S_C}\ns_and_b32 {S_C}, {S_C}, 3\ns_add_u32 {S_C}, {S_C}, {CB}\ns_sub_u32 {S_A}, {S_C}, 9\ns_min_u32 {S_C}, {S_C}, {S_A}")
    else: a(f"s_mov_b32 {S_C}, {CB}")
    G = [f"v_and_b32 v{vL}, 63, v0\nv_and_b32 v{t1}, 6, v{t3}\nv_xor_b32 v{t1}, v{t1}, v{vL}\nv_and_b32 v{t1}, 7, v{t1}\nv_lshl_add_u32 v{t1}, v{t1}, 4, {T2}\nv_mul_u32_u24 v{t3}, 1152, v{t3}\nv_add_u32 v{vWoG}, v{t1}, v{t3}"] + setup_groups("L")
    aloc = (lambda c: (SLOT, 2 * SLOT, WOB + 24576, 0)[c % 4]) if a4 else (lambda c: slot_of(c) * SLOT)
    assert not a4 or (len(wsteps) <= 4 and wo_pre <= 6)
    ops = []; meta = []; cstart = {}
    nW = len(wsteps); nlate = 2 * (9 - nW); assert nW <= 6 and wo_pre <= nlate
    if wo_pre == nlate: wotouch = 0
    for c in range(9):
        sl = slot_of(c) * SLOT; cstart[c] = len(ops)
        for n in range(3): ops.append((vA + n, sX, S_A, 0, aloc(c) + n * 4096))
        for n in range(2):
            for sec in range(3): ops.append((vB + n, sWq, S_B, sec * 1152, sl + 12288 + sec * 8192 + n * 4096))
        meta += [("C", c, k) for k in range(9)]
        for k, c_ in enumerate(wsteps):
            if c_ == c:
                ops += [(vWoG, sWo, S_A, 0, None)] * 2; meta += [("M", k, 0), ("M", k, 1)]
    for n in range(wo_pre): ops.append((vWoG, sWo, S_A, 0, WOB + n * 4096)); meta.append(("W", n, 0))
    bars = [(cstart[k >> 1] + cnt - 9 * (k >> 1), k) for cnt, k in bars]
    bi = 0
    late = []
    def at16():
        a(f"v_mov_b32 v{vFl}, {FL}\nds_read_b32 v{t0}, v{vFl}")
    et = f"buffer_load_dword v{vWoG+3}, v{vWoG+3}, {srd(sEx)}, s{S_Q} offen sc1"
    if etouch:
        G.append(f"s_mul_i32 {T0}, {S_LB}, 3\nv_cmp_gt_u32 vcc, 24, v{vL}\nv_lshl_add_u32 v{t0}, v{vL}, 7, {T0}\nv_bfrev_b32 v{t1}, 2\nv_cndmask_b32 v{vWoG+3}, v{t1}, v{t0}, vcc")
    if wotouch:
        G.append(f"s_lshr_b32 {T0}, {S_LB}, 4\nv_add_u32 v{t0}, {T0}, v{vL}\nv_mul_u32_u24 v{t0}, 3, v{t0}\nv_add_u32 v{t0}, {S_RGL}, v{t0}\nv_cmp_gt_u32 vcc, {32*nlate-32*wo_pre}, v{t0}\ns_lshl_b32 {T0}, {S_J}, 6\ns_add_u32 {T0}, {T0}, {32*wo_pre}\nv_add_u32 v{t0}, {T0}, v{t0}")
        G.append(f"v_subrev_u32 v{t1}, 576, v{t0}\nv_min_u32 v{t0}, v{t0}, v{t1}\nv_mul_u32_u24 v{t0}, 1152, v{t0}\ns_lshl_b32 {T0}, {S_J}, 7\nv_add_u32 v{t0}, {T0}, v{t0}\nv_cndmask_b32 v{vWoG+2}, -16, v{t0}, vcc")
    def hstub():
        nsv = ns[0]; ns[0] = 1
        a(f"L_help:\ns_cmp_ge_u32 s2, 256\ns_cbranch_scc1 L_end\nv_and_b32 v{vL}, 63, v0")
        a(f"s_sub_u32 {T0}, {S_SLOT}, 27\ns_lshl_b32 {T0}, {T0}, 6\nv_add_u32 v2, {T0}, v{vL}\ns_lshr_b32 {T0}, {S_XCD}, 1\ns_mul_i32 {T0}, {T0}, 510\ns_and_b32 {T1}, {S_XCD}, 1\ns_add_u32 {T0}, {T0}, {T1}")
        a(f"v_cmp_gt_u32 vcc, 262, v2\nv_lshl_add_u32 v2, v2, 1, {T0}\nv_mul_u32_u24 v2, 1152, v2\ns_add_u32 {T1}, {CB}, {S_W}\ns_add_u32 {T1}, {T1}, 1\ns_sub_u32 {T2}, {T1}, 9\ns_min_u32 {T1}, {T1}, {T2}\ns_lshl_b32 {T1}, {T1}, 7")
        a(f"v_bfrev_b32 v3, 2\nv_cndmask_b32 v2, v3, v2, vcc")
        if not cx:
            a(f"s_sub_u32 {T0}, {S_SLOT}, 27\ns_cmp_lt_u32 {T0}, 4\ns_cselect_b32 {T2}, 54, 0\nv_cmp_gt_u32 vcc, {T2}, v{vL}\ns_mul_i32 {T0}, {T0}, 54\ns_add_u32 {T2}, {S_W}, 1\ns_lshl_b32 {T2}, {T2}, 3\ns_add_u32 {T2}, {T2}, {S_XCD}\ns_mul_i32 {T2}, {T2}, 216\ns_add_u32 {T0}, {T0}, {T2}\nv_add_lshl_u32 v4, v{vL}, {T0}, 7\nv_cndmask_b32 v4, v3, v4, vcc")
        a("s_waitcnt lgkmcnt(0)")
        if sset != "e2e": st()
        if not cx: a(f"buffer_load_dword v9, v4, {srd(sWq)}, 0 offen")
        a(f"buffer_load_dword v10, v2, {srd(sX)}, {T1} offen\ns_branch L_help2")
        ns[0] = nsv
    nx = 0
    xpos = None; bi_hs3 = None
    def landedL(i, nout):
        tot = i + nx - nout
        return tot - (1 if (xpos is not None and tot > xpos) else 0)
    m0v = None; nG = len(G)
    def setm0(val):
        nonlocal m0v
        if m0v is not None and -32768 <= val - m0v <= 32767: a(f"s_addk_i32 m0, {(val - m0v) & 0xffff}")
        else: a(f"s_add_u32 m0, {S_LB}, {val}")
        m0v = val
    for i, (v, s, so, off, dst) in enumerate(ops):
        if i == 9 and tramp: a("s_branch L_tskip\n" + "s_nop 0\n" * tpad + "L_tramp:\ns_branch L_comp\nL_tskip:")
        if i == hpos:
            a("s_branch L_hskip"); hstub(); a("L_hskip:")
        if bi_hs3 is not None and bi > bi_hs3 and xpos is None and meta[i][0::2] != ("M", 1):
            assert i < cstart[8] + 6
            a(f"s_mov_b32 m0, {FL}\nbuffer_load_dword v{vWoG+4}, {srd(sEx)}, 0 offen sc1 lds")
            xpos = i; nx = 1; m0v = None
        kind_, c_, k_ = meta[i]
        if kind_ == "M":
            m0v = None
            if k_ == 0:
                if lat: a(f"s_bfe_u32 {S_A}, s70, {(4 << 16) | (4 * c_)}")
                else: a(f"s_mov_b32 {S_A}, {9 - nW + c_}")
                a(f"s_lshl_b32 {S_B}, {S_A}, 13\ns_add_u32 {S_B}, {S_B}, {S_LB}\ns_add_u32 m0, {S_B}, {WOB}\ns_add_u32 {S_A}, {S_A}, {S_J}\ns_sub_u32 {S_B}, {S_A}, 9\ns_min_u32 {S_A}, {S_A}, {S_B}\ns_mul_i32 {S_A}, {S_A}, 73728")
            else: a(f"s_addk_i32 m0, 4096\ns_add_u32 {S_A}, {S_A}, 36864")
            assert len(G) <= nG - 2
        else: setm0(dst - off)
        if i == D:
            for _ in range(min(spread, len(G))): a(G.pop(0))
        elif i > D and G and (i >= gstart or len(G) > nG - 8): a(G.pop(0))
        if i - 1 in hs:
            k = hs.index(i - 1)
            ld = [f"s_load_dword {H0}, {sp(sK2)}, {S_COL}", f"s_load_dword {H0}, {sp(sEx)}, {FOFF+768}"][k >> 1]
            if k == 0: a(f"s_lshl_b32 {S_COL}, {S_XCD}, 5\n{ld}")
            else: a(f"s_cmp_eq_u32 {S_W}, 7\ns_cbranch_scc0 L_hs{k}b")
            if k == 1:
                a(f"L_hs1c:\ns_waitcnt lgkmcnt(0)\ns_cmp_eq_u32 {H0}, 0\ns_cbranch_scc1 L_hs1\nL_hs1d:\ns_atomic_add {S_FV}, {sp(sEx)}, {FOFF+768}")
                late.append(f"L_hs1:\n{SPIN}L_hs1d\ns_sleep 2\n{ld} glc\ns_branch L_hs1c")
            if k == 2: a(ld + " glc")
            if k == 3:
                a(f"L_hs3c:\ns_waitcnt lgkmcnt(0)\ns_and_b32 {H0}, {H0}, 63\ns_cmp_lt_u32 {H0}, 9\ns_cbranch_scc1 L_hs3")
                late.append(f"L_hs3:\n{SPIN}L_hs3b\ns_sleep 2\n{ld} glc\ns_branch L_hs3c")
            if k: a(f"L_hs{k}b:")
            if k == 3: bi_hs3 = bi
            if k == 1: assert bars[bi - 1][1] >= sbar and sbar in barsteps
        if kind_ == "C" and k_ == 0:
            if c_ == 1 and lat:
                pk = [sum(x << (4 * k) for k, x in enumerate(o[1:])) for o in order]
                pw = []
                for gs in lat:
                    grp = [g_ for g_, n_ in enumerate(gs) for _ in range(n_)]
                    for r_ in range(3):
                        o = []
                        for k, st_ in enumerate(wsteps):
                            mem = [x for x, y in enumerate(wsteps) if grp[y] == grp[st_]]
                            per_ = wsteps.count(wsteps[mem[0]])
                            if wrot: mem = list(range(nW)); per_ = wrot
                            o.append(9 - nW + mem[(mem.index(k) + r_ * per_) % len(mem)])
                        pw.append(sum(x << (4 * k) for k, x in enumerate(o)))
                a(s68)
                a(f"s_mov_b32 s69, {pk[0]}\ns_mov_b32 s70, {pw[0]}")
                for k in range(1, 9):
                    if pk[k] != pk[0] or pw[k] != pw[0]: a(f"s_cmp_eq_u32 s68, {k}\ns_cselect_b32 s69, {pk[k]}, s69" + (f"\ns_cselect_b32 s70, {pw[k]}, s70" if pw[k] != pw[0] else ""))
            if i and lat: a(f"s_bfe_u32 {S_C}, s69, {(4 << 16) | (4 * (c_ - 1))}\ns_add_u32 {S_C}, {S_C}, {CB}\ns_sub_u32 {S_A}, {S_C}, 9\ns_min_u32 {S_C}, {S_C}, {S_A}")
            elif i: a(f"s_add_u32 {S_C}, {S_C}, 1\ns_cmp_eq_u32 {S_C}, 9\ns_cselect_b32 {S_C}, 0, {S_C}")
            a(f"s_lshl_b32 {S_A}, {S_C}, 7")
        if kind_ == "C" and k_ == 1:
            a(f"s_mul_i32 {S_B}, {S_C}, {64*3456}")
        if kind_ == "W":
            assert not G
            a(f"s_mul_i32 {S_A}, s{S_Q+(c_>>1)}, 6" if c_ % 2 == 0 else f"s_add_u32 {S_A}, {S_A}, 36864")
        if i == 0:
            a("s_waitcnt lgkmcnt(0)"); st()
        Dc = lambda: Db0 if (bi == 0 and Db0 is not None) else (Db if isinstance(Db, int) else int(Db[bars[bi][1] >> 1], 16))
        needk = 2 * (c_ - (3 if a4 and k_ < 3 else 2)) if kind_ == "C" and c_ >= 3 else (14 if kind_ == "W" else -1)
        while bi < len(bars) and (landedL(i, Dc()) >= bars[bi][0] or bars[bi][1] <= needk):
            a(f"s_waitcnt vmcnt({max(n_ for n_ in range(40) if landedL(i, n_) >= bars[bi][0])})")
            st("gemm"); a("s_barrier"); bi += 1
            if bars[bi - 1][1] == 16: at16()
        a(f"buffer_load_dwordx4 v{v}, {srd(s)}, {so} offen" + (f" offset:{off}" if off else "") + " lds")
    assert xpos is not None and WL >= 4
    wt = f"buffer_load_dword v{vWoG+2}, v{vWoG+2}, {srd(sWo)}, 0 offen"
    if etouch == 1: a(et)
    if wotouch == 1: a(wt)
    while bi < len(bars):
        a(f"s_waitcnt vmcnt({len(ops) + (wotouch == 1) + (etouch == 1) - bars[bi][0]})")
        st("gemm"); a("s_barrier"); bi += 1
        if bars[bi - 1][1] == 16: at16()
    if wotouch == 2: a(wt)
    if etouch == 2: a(et)
    wowait = f"s_waitcnt vmcnt({(wotouch > 0) + (etouch > 0)})"
    st()
    if aout: a(f"s_mov_b64 {sp(sX)}, {sp(sOut)}")
    a(f"s_waitcnt lgkmcnt(0)\nv_readfirstlane_b32 {S_COL}, v{t0}\ns_mul_i32 {S_FV}, {S_FV}, {10 if force_sc1 else 9}\ns_cmp_lt_u32 {S_W}, 6\ns_cbranch_scc1 L_attnL")
    late.append(decide("attnD")); a("L_attnDs:")
    wosig = f"s_mov_b64 exec, 1\nds_add_u32 v{vFl}, v{vOne} offset:4\ns_mov_b64 exec, -1"
    frags = [(k, 0, ti) for k in range(2) for ti in range(3)]
    for k in range(2): frags += [(k, q, ti) for q in range(1, 9) for ti in range(2)] + [(k, q, 2) for q in range(1, 9)]
    floc = lambda f: (0, f) if f < 18 else ((1, 2 * f) if f < 25 else ((1, 2 * (f - 25)) if f < 43 else (0, (0 if reuse else 36) + f - 43)))
    assert reuse == 2
    if reuse == 2:
        assert pre2 >= 7
        floc1 = floc; fr2 = [0, 2, 4, 6, 10, 12, 18, 20, 26, 28, 34]
        floc = lambda f: (2, 2 * (f - 18)) if 18 <= f < 25 else (floc1(f) if f < 43 else (2, 15 + fr2[f - 43]))
        nowar = 1
    bstart = (6, 22, 30, 46)
    bmask = ((1 << 18) - 1, (0x1ff << 18) | (0 if no54 else 7 << 54), ((1 << 18) - 1) << 27, 0x1ff << 45)
    a(f"s_setprio {lprio}\nv_add_u32 v{vWoG+1}, {-16*1152 & 0xffffffff}, v{vWoG}")
    if early: a("s_barrier")
    a(wowait)
    a("s_barrier")
    for k, n in enumerate(range(wo_pre, nlate)):
        for h in range(2):
            setm0(WOB + n * 4096 - h * 2048)
            if h == 0: a(f"s_mul_i32 {S_A}, s{S_Q+(n>>1)}, 6" if n % 2 == 0 else f"s_add_u32 {S_A}, {S_A}, 36864")
            if 2 * k + h >= D3: a(f"s_waitcnt vmcnt({D3-1})")
            a(f"buffer_load_dwordx4 v{vWoG+h}, {srd(sWo)}, {S_A} offen lds")
    for x in G67: a(x)
    a(f"s_and_b32 {T2}, {S_W}, 1\ns_mul_i32 {S_A}, {T2}, 18432\ns_lshl_b32 {S_B}, {T2}, 10")
    a(f"s_getpc_b64 s[60:61]\ns_lshl_b32 {H0}, {T2}, 6\ns_add_u32 {H0}, {H0}, {FL+64}")
    if wo_pre < nlate: a("s_waitcnt vmcnt(0)\n" + wosig)
    st()
    seq = []; ci = 0
    def landed(nout): return 6 + sum(1 for k in seq[:len(seq) - nout] if k == "F")
    def wait_ck():
        nonlocal ci
        nout = max(n for n in range(len(seq) + 1) if landed(n) >= cks[ci])
        if nout < len(seq): a(f"s_waitcnt vmcnt({nout})")
        st("post"); a("s_barrier"); ci += 1
    PL = 60
    pollb = lambda b: f"buffer_load_dword v{PL+b}, v{vTw}, {srd(sEx)}, 0 offen sc1"
    if border == 1: bmask = (bmask[0], bmask[1] | bmask[2], 0, bmask[3])
    def dflag():
        nout = max(n for n in range(len(seq) + 1) if landed(n) >= (46 if aout == 2 else 30))
        a(("s_mov_b64 exec, 1\n" if dex else "") + f"s_waitcnt vmcnt({nout})\nbuffer_store_dword v{vOne}, v{vDs}, {srd(sEx)}, 0 offen" + ("\ns_mov_b64 exec, -1" if dex else "")); seq.append("D")
    for f, (kind, q, ti) in enumerate(frags):
        if f < 6: continue
        while ci < (1 if mk else len(cks)) and ckpos[ci] <= f: wait_ck()
        if f in bstart and not (nochk and f > 6) and bmask[bstart.index(f)]:
            b = bstart.index(f)
            poll2 = pollb(b)
            if b == 0: a(f"s_mov_b64 exec, {bmask[0]}\n{poll2}\ns_mov_b64 exec, -1" if pex else poll2); seq.append("P0")
            nout = seq[::-1].index(f"P{b}")
            a(f"s_mov_b32 s{sM}, {bmask[b] & 0xffffffff}\ns_mov_b32 s{sM+1}, {bmask[b] >> 32}\ns_waitcnt vmcnt({nout})")
            chk = f"v_cmp_ne_u32 vcc, 0, v{PL+b}\ns_nop 0\ns_andn2_b64 {sp(sM)}, {sp(sM)}, vcc\ns_cbranch_scc1 L_k{b}r"
            a(f"{chk}\nL_k{b}d:")
            if b == 0 and pdep > 1:
                pl = lambda k: f"buffer_load_dword v{PL+8+k}, v{vTw}, {srd(sEx)}, 0 offen sc1"
                x = "L_k0r:\n" + "".join(pl(k) + "\ns_nop 7\n" for k in range(pdep - 1)) + f"L_k0l:\n{SPIN}L_k0d\n"
                for k in range(pdep):
                    x += f"{pl((k - 1) % pdep)}\ns_waitcnt vmcnt({pdep-1})\nv_cmp_ne_u32 vcc, 0, v{PL+8+k}\ns_nop 0\ns_andn2_b64 {sp(sM)}, {sp(sM)}, vcc\ns_cbranch_scc0 L_k0d\n"
                late.append(x + "s_branch L_k0l")
            else:
                p2 = f"s_mov_b64 exec, {sp(sM)}\n{poll2}\ns_mov_b64 exec, -1" if pex else poll2
                if psl and b == 0: p2 = f"s_sleep {psl}\n" + p2
                late.append(f"L_k{b}r:\n{SPIN}L_k{b}d\n{p2}\ns_waitcnt vmcnt(0)\n{chk}\ns_branch L_k{b}d")
            st("post")
        if f == 25: assert ci >= 1 and lk1
        if f == warl and (pre2 < 18 or reuse) and not nowar: st("post"); a("s_barrier")
        if wb and f == wb[0]:
            a(f"s_lshl_b32 {T0}, {S_SLOT if wb[1] == 1 else S_J}, 3\ns_add_u32 {T0}, {T0}, {S_W}\ns_cmp_lg_u32 {T0}, {4*8+7}\ns_cbranch_scc1 L_nowb\nbuffer_wbl2 sc1\nL_nowb:")
        reg, idx = floc(f)
        off = kind * 1024 + (2048 if ti == 1 else 0)
        dst = (R0B, XB, SPB)[reg] + idx * 1024; so = f"s{S_Q+q}"
        if aout and f == dpos[0]: dflag()
        if aout and (kind == 0 or (aout == 2 and ti < 2)):
            a(f"s_add_u32 m0, {(S_A, S_B, S_B)[reg]}, {dst}")
            if ti != 1: a(f"s_mul_i32 {S_C}, {so}, 683\ns_lshr_b32 {S_C}, {S_C}, 16" + (f"\ns_add_u32 {S_C}, {S_C}, 110592" if kind else ""))
            a(f"buffer_load_dwordx4 v{vAo+ti}, {srd(sX)}, {S_C} offen sc1 lds")
        else:
            if dst < off:
                a(f"s_add_u32 {S_C}, {so}, {off}"); so = S_C; off = 0
            a(f"s_add_u32 m0, {(S_A, S_B, S_B)[reg]}, {dst - off}")
            a(f"buffer_load_dwordx4 v{vR1 if ti == 2 else vR0}, {srd(sD)}, {so} offen" + (f" offset:{off}" if off else "") + " sc1 lds")
        seq.append("F")
        polld = f"buffer_load_dword v{PL+4}, v{vDp}, {srd(sEx)}, 0 offen sc1"
        if dex: polld = f"s_mov_b64 exec, 0x3ffff\n{polld}\ns_mov_b64 exec, -1"
        if aout and f == dpos[1] and cpoll is None: a(polld); seq.append("PD")
        if mk and f + 1 in cks[1:]:
            a(f"s_add_u32 m0, {H0}, {4*cks.index(f+1)}\ns_mov_b64 exec, 1\nglobal_load_lds_dword v{vL}, s[60:61]\ns_mov_b64 exec, -1"); seq.append("M"); st("p2")
        if f in ppos and not nochk:
            bm = bmask[ppos.index(f) + 1]
            if pex == 2: a(f"s_mov_b32 exec_lo, {bm & 0xffffffff}\ns_mov_b32 exec_hi, {bm >> 32}")
            a(pollb(ppos.index(f) + 1)); seq.append(f"P{ppos.index(f) + 1}")
            if pex == 2: a("s_mov_b64 exec, -1")
    if aout and dpos[0] == 54: dflag()
    if aout and cpoll is None:
        chk = f"v_cmp_ne_u32 vcc, 0, v{PL+4}\ns_add_u32 m0, {H0}, {4*len(cks)}\ns_andn2_b32 {S_DM}, {S_DM}, vcc_lo\ns_cbranch_scc1 L_kdr"
        a(f"s_waitcnt vmcnt({seq[::-1].index('PD')})\n{chk}\nL_kdd:\ns_mov_b64 exec, 1\nglobal_load_lds_dword v{vL}, s[60:61]\ns_mov_b64 exec, -1")
        late.append(f"L_kdr:\n{SPIN}L_kdd\n{polld}\ns_waitcnt vmcnt(0)\n{chk}\ns_branch L_kdd")
        assert len(cks) < 16
    while not mk and ci < len(cks): wait_ck()
    if mk:
        st("post"); a("s_waitcnt vmcnt(0)"); st("post")
    a("s_branch L_fin")
    for x in late: a(x)

    if hpos is None: hstub()
    a("L_help2:")
    ns[0] = 2
    if aout: a(f"s_mov_b64 {sp(sX)}, {sp(sWo+2)}")
    a(f"s_mov_b32 s{sWo+2}, 663552\ns_mov_b32 s{sWo+3}, 0x20000\ns_mul_i32 {T0}, {S_XCD}, {3*GSZ}\ns_add_u32 s{sEx}, s{sK2+2}, {T0}\ns_addc_u32 s{sEx+1}, s{sK2+3}, 0\ns_mov_b32 s{sEx+2}, {3*GSZ}\ns_mov_b32 s{sEx+3}, 0x20000")
    if "o" in help: a("v_mov_b32 v12, -1")
    a(f"s_cmp_lg_u32 {S_SLOT}, 31\ns_cbranch_scc1 L_noinit\ns_cmp_lg_u32 {S_W}, 7\ns_cbranch_scc1 L_noinit2")
    a(f"v_lshlrev_b32 v3, 4, v{vL}\nv_mov_b32 v4, 0\nv_mov_b32 v5, 0\nv_mov_b32 v6, 0\nv_mov_b32 v7, 0")
    for g_ in range(3): a(f"s_mov_b32 {T0}, {g_*GSZ + FOFF}\nbuffer_store_dwordx4 v[4:7], v3, {srd(sEx)}, {T0} offen sc1")
    a(f"s_barrier\ns_lshl_b32 {T0}, {S_XCD}, 5\ns_mov_b32 {T1}, 1\ns_waitcnt vmcnt(0)\ns_atomic_or {T1}, {sp(sK2)}, {T0}\ns_mov_b32 exec_hi, 0xff00ffff")
    for g_ in range(3): a(f"s_mov_b32 {T0}, {g_*GSZ + FOFF}\nbuffer_load_dwordx4 v[4:7], v3, {srd(sEx)}, {T0} offen sc1")
    a("s_mov_b64 exec, -1\ns_branch L_noinit\nL_noinit2:")
    if not oord:
        a(f"s_lshl_b32 {T0}, {S_W}, 6\nv_add_u32 v2, {T0}, v{vL}\ns_mul_i32 {T0}, {S_XCD}, 216\ns_add_u32 {T0}, {T0}, {512*27}\nv_cmp_gt_u32 vcc, 216, v2\nv_add_lshl_u32 v8, v2, {T0}, 7\ns_mul_i32 {T0}, {S_XCD}, 648\nv_cndmask_b32 v11, -1, v8, vcc")
        a(f"v_add_lshl_u32 v12, v2, {T0}, 7\nv_cmp_le_u32 vcc, 248, v2\nv_add_u32 v13, {200*128}, v12\ns_barrier\nv_cndmask_b32 v13, -1, v13, vcc")
        a(f"buffer_load_dword v11, v11, {srd(sWq)}, 0 offen\nbuffer_load_dword v13, v13, {srd(sWo)}, 0 offen\nbuffer_load_dword v12, v12, {srd(sWo)}, 0 offen")
    else:
        def woaddr(dst, src):
            a(f"v_lshrrev_b32 v20, 3, v{src}\nv_mul_u32_u24 v21, 57, v20\nv_lshrrev_b32 v21, 9, v21\nv_mul_u32_u24 v22, 9, v21\nv_sub_u32 v20, v20, v22\nv_sub_u32 v21, v20, v21\nv_add_u32 v21, 8, v21")
            a(f"v_subrev_u32 v22, 9, v21\nv_min_u32 v21, v21, v22\nv_and_or_b32 v22, v{src}, 7, {T1}\nv_lshl_add_u32 v21, v21, 6, v22\nv_mul_u32_u24 v21, 1152, v21\nv_lshl_add_u32 v21, v20, 7, v21\nv_cndmask_b32 v{dst}, -1, v21, vcc")
        a(f"s_lshl_b32 {T0}, {S_W}, 6\nv_add_u32 v2, {T0}, v{vL}\ns_mul_i32 {T0}, {S_XCD}, 216\ns_add_u32 {T0}, {T0}, {512*27}\nv_cmp_gt_u32 vcc, 216, v2\nv_add_lshl_u32 v8, v2, {T0}, 7\ns_lshl_b32 {T1}, {S_XCD}, 3\nv_cndmask_b32 v11, -1, v8, vcc")
        a(f"v_cmp_le_u32 vcc, 216, v2\nv_subrev_u32 v9, 216, v2\nv_and_b32 v9, 0x1ff, v9\ns_barrier" + (f"\nbuffer_load_dword v11, v11, {srd(sWq)}, 0 offen" if cx else ""))
        woaddr(13, 9)
        a(f"buffer_load_dword v13, v13, {srd(sWo)}, 0 offen\nv_cmp_gt_u32 vcc, 416, v2\nv_add_u32 v9, 232, v2")
        woaddr(12, 9)
        if "o" not in help: a(f"buffer_load_dword v12, v12, {srd(sWo)}, 0 offen")
    a("L_noinit:")
    a(f"s_sub_u32 {T0}, {S_SLOT}, 27\ns_mul_i32 {T1}, {S_W}, 5\ns_add_u32 {T3}, {T0}, {T1}\ns_lshl_b32 {T0}, {T3}, 6\nv_add_u32 v2, {T0}, v{vL}")
    T = 2560; r = 14; wl = False
    for h in help:
        if h == "E" and aout == 2:
            a(f"v_lshrrev_b32 v8, 4, v2\nv_mul_u32_u24 v9, 57, v8\nv_lshrrev_b32 v9, 9, v9\nv_mad_u32_u24 v8, v8, 12, v9\nv_bfe_u32 v9, v2, 3, 1\nv_lshl_add_u32 v8, v9, 1, v8\nv_add_u32 v8, 9, v8\nv_and_b32 v9, 7, v2\nv_lshl_add_u32 v8, v8, 3, v9\nv_cmp_gt_u32 vcc, 432, v2\nv_lshlrev_b32 v8, 7, v8\nv_sub_u32 v20, {T-1}, v2\nv_cndmask_b32 v8, -1, v8, vcc")
            a(f"buffer_load_dword v{r}, v8, {srd(sEx)}, 0 offen"); r += 1
            a(f"v_mul_u32_u24 v21, {(1<<18)//9+1}, v20\nv_lshrrev_b32 v21, 18, v21\nv_mul_u32_u24 v22, 9, v21\nv_sub_u32 v22, v20, v22\nv_mul_u32_u24 v23, {(1<<16)//80+1}, v21\nv_lshrrev_b32 v23, 16, v23\nv_mad_u32_u24 v21, v23, 5, v21")
            a(f"s_lshr_b32 {T0}, {S_XCD}, 1\ns_mul_i32 {T0}, {T0}, 510\ns_and_b32 {T1}, {S_XCD}, 1\ns_add_u32 {T0}, {T0}, {T1}\ns_add_u32 {T0}, {T0}, 16\nv_cmp_gt_u32 vcc, 2160, v20\nv_lshl_add_u32 v21, v21, 1, {T0}\nv_mul_u32_u24 v21, 1152, v21\nv_lshl_add_u32 v21, v22, 7, v21\nv_cndmask_b32 v21, -1, v21, vcc")
            a(f"buffer_load_dword v{r}, v21, {srd(sX)}, 0 offen"); r += 1
        elif h == "E" and aout:
            a(f"v_lshrrev_b32 v8, 3, v2\nv_mul_u32_u24 v9, {(1<<16)//54+1}, v8\nv_lshrrev_b32 v9, 16, v9\nv_lshl_add_u32 v8, v8, 1, v9\nv_add_u32 v8, 1, v8\nv_and_b32 v9, 7, v2\nv_lshl_add_u32 v8, v8, 3, v9\nv_cmp_gt_u32 vcc, 1296, v2\nv_lshlrev_b32 v8, 7, v8\nv_sub_u32 v20, {T-1}, v2\nv_cndmask_b32 v8, -1, v8, vcc")
            a(f"buffer_load_dword v{r}, v8, {srd(sEx)}, 0 offen"); r += 1
            a(f"v_mul_u32_u24 v21, {(1<<18)//9+1}, v20\nv_lshrrev_b32 v21, 18, v21\nv_mul_u32_u24 v22, 9, v21\nv_sub_u32 v22, v20, v22\nv_mul_u32_u24 v23, {(1<<16)//48+1}, v21\nv_lshrrev_b32 v23, 16, v23\nv_mad_u32_u24 v21, v23, 37, v21")
            a(f"s_lshr_b32 {T0}, {S_XCD}, 1\ns_mul_i32 {T0}, {T0}, 510\ns_and_b32 {T1}, {S_XCD}, 1\ns_add_u32 {T0}, {T0}, {T1}\ns_add_u32 {T0}, {T0}, 16\nv_cmp_gt_u32 vcc, 1296, v20\nv_lshl_add_u32 v21, v21, 1, {T0}\nv_mul_u32_u24 v21, 1152, v21\nv_lshl_add_u32 v21, v22, 7, v21\nv_cndmask_b32 v21, -1, v21, vcc")
            a(f"buffer_load_dword v{r}, v21, {srd(sX)}, 0 offen"); r += 1
        elif h == "E":
            a(f"v_mul_u32_u24 v8, {(1<<20)//864+1}, v2\nv_lshrrev_b32 v8, 20, v8\nv_lshl_add_u32 v8, v8, 3, v2\nv_lshlrev_b32 v8, 7, v8")
            a(f"buffer_load_dword v{r}, v8, {srd(sEx)}, 0 offen"); r += 1
            a(f"v_add_u32 v8, {T+16}, v2\nv_cmp_gt_u32 vcc, 32, v2\nv_lshlrev_b32 v8, 7, v8\nv_cndmask_b32 v8, -1, v8, vcc\nbuffer_load_dword v{r}, v8, {srd(sEx)}, 0 offen"); r += 1
        if h == "O":
            a("v_lshlrev_b32 v9, 7, v2")
            for k in range(3):
                a(f"s_mov_b32 {T0}, {k*T*128}\nbuffer_load_dword v{r}, v9, {srd(sWo)}, {T0} offen"); r += 1
        if h.isdigit():
            if not wl:
                wl = True
                a(f"s_mul_i32 {T0}, {T3}, 44\nv_add_u32 v30, {T0}, v{vL}\nv_mul_u32_u24 v31, {(1<<16)//27+1}, v30\nv_lshrrev_b32 v31, 16, v31\nv_mul_u32_u24 v32, 27, v31\nv_sub_u32 v32, v30, v32")
                a(f"v_cmp_gt_u32 vcc, 44, v{vL}\nv_cmp_gt_u32 {sp(sM)}, 64, v31\nv_mul_u32_u24 v31, 3456, v31\nv_lshl_add_u32 v31, v32, 7, v31\ns_and_b64 vcc, vcc, {sp(sM)}\nv_bfrev_b32 v33, 2\nv_cndmask_b32 v31, v33, v31, vcc")
                if cj: a(f"v_subrev_u32 v33, 9, v32\nv_min_u32 v32, v32, v33\nv_subrev_u32 v33, 9, v32\nv_min_u32 v32, v32, v33\nv_add_u32 v32, {S_XCD}, v32\nv_subrev_u32 v33, 9, v32\nv_min_u32 v32, v32, v33")
                else: a(f"v_mov_b32 v32, {S_XCD}")
                a(f"s_mov_b32 {T2}, {64*3456}")
            a(f"v_add_u32 v33, {int(h)}, v32\nv_subrev_u32 v34, 9, v33\nv_min_u32 v33, v33, v34\nv_mad_u32_u24 v33, v33, {T2}, v31\nbuffer_load_dword v{r}, v33, {srd(sWq)}, 0 offen"); r += 1
        if h == "o": a(f"buffer_load_dword v12, v12, {srd(sWo)}, 0 offen")
        if h == "H":
            SPINH = SPIN.replace("0x40000", "64")
            a(f"s_cmp_lg_u32 {S_W}, 0\ns_cbranch_scc1 L_hw2\ns_mov_b32 {S_SP}, 0\ns_lshl_b32 {T1}, {S_XCD}, 5\ns_waitcnt vmcnt(0)")
            a(f"L_hw0:\ns_load_dword {T0}, {sp(sK2)}, {T1} glc\n{SPINH}L_hw2\ns_waitcnt lgkmcnt(0)\ns_cmp_eq_u32 {T0}, 0\ns_cbranch_scc1 L_hw0")
            a(f"s_sub_u32 {T1}, {S_SLOT}, 27\ns_lshr_b32 {T1}, {T1}, 1\ns_mul_i32 {T1}, {T1}, {GSZ}\ns_add_u32 {T1}, {T1}, {FOFF+768}")
            a(f"L_hw1:\ns_load_dword {T0}, {sp(sEx)}, {T1} glc\n{SPINH}L_hw2\ns_waitcnt lgkmcnt(0)\ns_and_b32 {T0}, {T0}, 63\ns_cmp_lt_u32 {T0}, 9\ns_cbranch_scc1 L_hw1\nL_hw2:\ns_waitcnt lgkmcnt(0)\ns_barrier")
        if h in "FG":
            a(f"s_cmp_lg_u32 {T3}, 0\ns_cbranch_scc1 L_hf2")
            a(f"v_mul_u32_u24 v20, 57, v{vL}\nv_lshrrev_b32 v20, 9, v20\nv_mul_u32_u24 v21, 9, v20\nv_sub_u32 v21, v{vL}, v21\nv_lshrrev_b32 v22, 1, v20\nv_and_b32 v20, 1, v20\nv_mul_u32_u24 v22, {GSZ}, v22")
            a(f"v_lshl_add_u32 v22, v20, 7, v22\nv_lshl_add_u32 v22, v21, 2, v22\nv_add_u32 v22, {FOFF + (512 if h == 'F' else 0) + 72}, v22\ns_mov_b32 exec_hi, 0x3fffff\ns_mov_b32 {T0}, 0")
            a(f"L_hf0:\nbuffer_load_dword v23, v22, {srd(sEx)}, 0 offen sc1\ns_add_u32 {T0}, {T0}, 1\ns_cmp_ge_u32 {T0}, 96\ns_cbranch_scc1 L_hf2\ns_waitcnt vmcnt(0)\nv_cmp_eq_u32 vcc, 0, v23\ns_cbranch_vccnz L_hf0")
            st(); a("buffer_wbl2 sc1\nL_hf2:")
        if h == "w": a("s_waitcnt vmcnt(0)")
        if h == "b": a("s_barrier")
    if stamp:
        a("s_waitcnt vmcnt(0)"); st(); a("s_branch L_fin")
    else:
        a("s_endpgm")

    ns[0] = 2 if sset == 'e2e' else 1
    if cpad is None: a(".p2align 6")
    else: a(f".p2align 12\n.fill {cpad // 4}, 4, 0xbf800000")
    a(f"L_comp:\nv_and_b32 v{vL}, 63, v0")
    a(f"v_and_b32 v{t0}, 15, v{vL}\nv_lshrrev_b32 v{t1}, 4, v{vL}\nv_lshrrev_b32 v{t2}, 1, v{t0}\nv_xor_b32 v{t2}, v{t2}, v{t1}\nv_lshlrev_b32 v{t2}, 4, v{t2}")
    if hsw: a(f"s_and_b32 {T0}, {S_RGL}, 1\ns_lshl_b32 {T0}, {T0}, 6\nv_xor_b32 v{t2}, {T0}, v{t2}")
    a(f"v_lshl_add_u32 v{vRA}, v{t0}, 7, v{t2}\nv_xor_b32 v{vRA+1}, 64, v{vRA}\nv_add_u32 v{vRA+2}, {2*SLOT}, v{vRA}\nv_add_u32 v{vRA+3}, {2*SLOT}, v{vRA+1}")
    a(f"v_bfe_u32 v{t0}, v{vL}, 2, 2\nv_lshl_add_u32 v{t2}, v{t1}, 3, v{t0}\nv_lshlrev_b32 v{t2}, 7, v{t2}\nv_bfe_u32 v{t0}, v{vL}, 3, 2\nv_xor_b32 v{t0}, {S_W}, v{t0}\nv_lshl_add_u32 v{t2}, v{t0}, 5, v{t2}")
    a(f"v_and_b32 v{t0}, 3, v{vL}\nv_lshl_add_u32 v{t2}, v{t0}, 3, v{t2}\nv_add_u32 v{vRB}, 12288, v{t2}\nv_add_u32 v{vRB+1}, {2*SLOT}, v{vRB}")
    a(f"s_lshl_b32 {T0}, {S_W}, 9\ns_add_u32 {T0}, {T0}, {XB}\nv_lshl_add_u32 v{vXw}, v{vL}, 3, {T0}")
    a(f"s_and_b32 {T1}, {S_W}, 1\ns_mul_i32 {T1}, {T1}, 504\ns_sub_u32 {T0}, {T0}, {T1}\nv_lshl_add_u32 v{vXw+1}, v{vL}, 4, {T0}")
    if widev: a(f"s_lshl_b32 {T0}, {S_W}, 3\ns_lshr_b32 {T0}, 0x81010080, {T0}\ns_and_b32 {T0}, {T0}, 0xff\ns_lshl_b32 {T0}, {T0}, 3\ns_add_u32 {T0}, {T0}, {XB}\nv_lshl_add_u32 v{vXw}, v{vL}, 4, {T0}")
    a("s_waitcnt lgkmcnt(0)")
    st()
    if dbgpre:
        for k in range(8): a(f"v_mul_u32_u24 v{FR+k}, {0x35a7 + 977*k}, v{vL}\nv_mul_u32_u24 v{FR+k}, {0x2f31 + 331*k}, v{FR+k}\nv_and_b32 v{FR+k}, 0xbfffbfff, v{FR+k}")
    GC = setup_groups("C") + [f"s_mul_i32 {S_FV}, {S_FV}, {10 if force_sc1 else 9}", "\n".join(f"v_mov_b32 v{248+k}, -1" for k in range(4))]
    def cset(k):
        for _ in range(min(len(GC), (cdef or {0: 99}).get(k, 0))): a(GC.pop(0))
    cset(0)
    for gi_, x in enumerate([]):
        a(x)
        for k in range(dbgpre): a(f"v_mfma_f32_16x16x32_bf16 v[{ACC+4*((gi_*dbgpre+k)%8)}:{ACC+4*((gi_*dbgpre+k)%8)+3}], v[{FR+4*(k&1)}:{FR+4*(k&1)+3}], v[{FR+4*(gi_&1)}:{FR+4*(gi_&1)+3}], 0")
    vCp_ = vO if aout == 2 else 59
    def sentinel():
        a((f"buffer_store_dwordx4 v[248:251], v{vXp}, {srd(sX)}, 0 offen" if aout == 2 else f"buffer_store_dwordx4 v[248:251], v{vO}, {srd(sD)}, s{S_Q} offen offset:1024") + f"\ns_add_u32 {T0}, s{S_Q}, 8192\ns_cmp_ge_u32 {S_W}, 2\ns_cbranch_scc1 L_nosent")
        a(f"buffer_store_dwordx4 v[248:251], v{vO}, {srd(sD)}, {T0} offen offset:1024\nL_nosent:")
        vCp_ = vO if aout == 2 else 59
        if aout == 2: a(f"v_and_b32 v{vO}, 31, v{vL}\nv_lshlrev_b32 v{vO}, 2, v{vO}\nv_add_u32 v{vO}, {FOFF+896}, v{vO}")
        else: assert cpoll is None
    if sent == 0: sentinel()
    if touch:
        a(f"s_mov_b64 exec, 1\nbuffer_load_dword v{204}, v{vO}, {srd(sEx)}, s{S_Q} offen sc1\nbuffer_load_dword v{204+1}, v{vO}, {srd(sWo)}, 0 offen\nbuffer_load_dword v{204+2}, v{vSt+1}, {srd(sOut)}, 0 offen sc1\nbuffer_load_dword v{204+3}, v{vSt+2}, {srd(sOut)}, 0 offen sc1\ns_mov_b64 exec, -1")
    TO = (4, 3, 5, 0, 1, 2) if early else tuple(range(6))
    def reads(s):
        c = s >> 1; sl = slot_of(c); F = FR + 36 * (s & 1) if s < 17 else 212
        ra = vRA + 2 * (sl >> 1) + (s & 1); rb = vRB + (sl >> 1); o = (sl & 1) * SLOT
        hi_ = aloc(c) >= 2 * SLOT; ra = vRA + 2 * hi_ + (s & 1)
        A_ = lambda t: f"ds_read_b128 {vr(F+4*t,4)}, v{ra} offset:{aloc(c) - 2*SLOT*hi_ + t*2048}"
        B_ = lambda sec, h: f"ds_read_b64_tr_b16 {vr(F+24+4*sec+2*h,2)}, v{rb} offset:{o + sec*8192 + (s&1)*4096 + h*512}"
        if secmaj and s < 16: return [B_(0,0), B_(0,1)] + [A_(t) for t in range(6)] + [B_(1,0), B_(1,1), B_(2,0), B_(2,1)]
        to = TO if s >= 16 else range(6)
        return [B_(0,0), B_(0,1), A_(to[0]), B_(1,0), B_(1,1), B_(2,0), B_(2,1)] + [A_(t) for t in to[1:]]
    def mfmas(s):
        F = FR + 36 * (s & 1) if s < 17 else 212; L = []
        for t in (TO if s >= 16 else range(6)):
            for sec in range(3):
                d = vr(ACC + 24 * sec + 4 * t, 4); x = vr(F + 4 * t, 4); w = vr(F + 24 + 4 * sec, 4)
                x, w = (w, x) if sec < 2 else (x, w)
                L.append(f"v_mfma_f32_16x16x32_bf16 {d}, {x}, {w}, {d if s else 0}")
        if secmaj == 1 and s < 16: L = L[0::3] + L[1::3] + L[2::3]
        if secmaj == 2 and s < 16: L = L[0::3] + L[1::3][::-1] + L[2::3]
        return L
    a.reset()
    a(f"s_waitcnt lgkmcnt(0)\nv_mov_b32 v{vFl}, {FL}")
    if prio0: a(f"s_setprio {prio0}")
    stl("gemm")
    a("s_barrier")
    if 0 in epts: st("e2e")
    for r in reads(0): a.e(r)
    for s in range(16):
        M = mfmas(s)
        R = reads(s + 1)
        if s == 15 and 17 not in barsteps:
            R17 = reads(17); R = R[:7] + R17[:7] + R[7:9]; Rrest = [x for p in zip(R17[7:], reads(16)[9:] + ["", ""]) for x in p if x]
        p0 = (PB if isinstance(PB, int) else int(PB[(s + 1) >> 1], 16)) if (s + 1) in barsteps else p1st
        per = -(-len(R) // (18 - p0))
        if dbgpause and s in dbgpause[0]: a(f"s_sleep {dbgpause[1]}")
        if cw2 and s not in barsteps: a.lgkm0()
        for k, m in enumerate(M):
            if cw2 and k == cwk and s in barsteps and (s + 1) not in barsteps:
                n_ = 12 - len(R)
                if len(a.lq) > n_: a(f"s_waitcnt lgkmcnt({n_})"); a.lq = a.lq[len(a.lq) - n_:]
            if k == p0 and (s + 1) in barsteps:
                a.lgkm0()
                cset(s + 1)
                if s + 1 == sent: assert sent < sbar and not GC; sentinel()
                if s + 1 == sbar: a("s_waitcnt vmcnt(0)")
                a("s_barrier"); stl("gemm")
                if s + 1 in (2, 4, 10, 16): st("g2")
                if s + 1 in epts: st("e2e")
            if k >= p0:
                for r in R[:per]:
                    if not noread: a.e(r)
                R = R[per:]
            if not nomfma: a.e(m)
        assert not R
    M16, M17 = mfmas(16), mfmas(17)
    if 17 in barsteps:
        R17 = reads(17); RA = [x for x in R17 if "b128" in x] + [f"ds_read_b32 v{t0}, v{vFl}"]; RB = [x for x in R17 if "tr_b16" in x]
        for k in range(PB2):
            a.e(M16[k])
            if RA and k >= 2: a.e(RA.pop(0))
        assert not RA
        a("s_barrier")
        LEAD0 = PB2; LEAD = min(18, PB2 + 5); R = RB
    else:
        R = Rrest + [f"ds_read_b32 v{t0}, v{vFl}"]; LEAD0 = 0
    def cv(k):
        t, sec = divmod(k, 3); t = TO[t]; d = ACC + 24 * sec + 4 * t
        if sec < 2: a.e(f"v_cvt_pk_bf16_f32 v{d}, v{d}, v{d+1}\nv_cvt_pk_bf16_f32 v{d+1}, v{d+2}, v{d+3}")
        else: a.e(f"v_cvt_pk_bf16_f32 v{d}, v{d}, v{d+2}\nv_cvt_pk_bf16_f32 v{d+1}, v{d+1}, v{d+3}")
    def wr(k):
        t, sec = divmod(k, 3); t = TO[t]; d = ACC + 24 * sec + 4 * t
        a.e(f"ds_write_b64 v{vXw + (wide and sec < 2)}, {vr(d,2)} offset:{t*6144 + sec*2048}" + (" ; w=x0" if k == 8 else ""))
        if early and k == 8 + xk: a.e("s_barrier ; r=x0")
    if LEAD0:
        for r in R[:2]: a.e(r)
        R = R[2:]
    for k in range(LEAD0, LEAD):
        a.e(M16[k])
        for r in R[:2]: a.e(r)
        R = R[2:]
    for k in range(18):
        a.e(M17[k])
        for r in R[:2]: a.e(r)
        R = R[2:]
        if k >= WL: wr(k - WL)
        if k + LEAD < 18: a.e(M16[k + LEAD])
        if k >= 3: cv(k - 3)
        if k == 8: a.e(f"v_readfirstlane_b32 {S_COL}, v{t0}\ns_waitcnt vmcnt(0)")
    for k in range(max(0, 18 - WL), 14): wr(k)
    cv(15); cv(16); cv(17); wr(14); wr(15); wr(16); wr(17)
    a("L_postC:")
    if prio0 != prio: a(f"s_setprio {prio}")
    a.lgkm0()
    st()
    lateC = decide("attnC")
    nsx = ns[0]

    def post(role, sfx, sm):
        late = []
        smB = sm
        if sfx[1] == "f" and not ntall: sm = ""
        ns[0] = nsx
        OA = 52; AF = 76; NA = 8; BB = 112
        Q, K, KP, QO, S = 112, 120, 128, 136, 152
        VR = {0: 192, 1: 196, 2: 200, 3: 52}
        VL = {0: 56, 1: 204, 2: 208, 3: 212}
        Pb = {0: 60, 4: 64, 1: 216, 2: 220, 3: 224}
        Ot = {0: 68, 3: 72, 1: 228, 2: 232}
        AB, RM, R_, PL = 76, 86, 104, 94
        Od = {1: 96, 2: 98, 0: 100, 3: 102}
        L = []
        def e(s): L.extend(x.strip() for x in s.split("\n") if x.strip())
        def flush(boost=None, hook=None, pollback=None, fapos=0):
            po = [x for x in L if "; PO" in x]; fa = [x for x in L if "; FA" in x]
            out, t = hz.sched([x for x in L if x not in po + fa], boost, vm_lat=vlC if role == "C" else vlL, sc=swc, lds_lat=ldl)
            if fa: out.insert(min(fapos, next(i for i, x in enumerate(out) if "w=sb" in x)), fa[0] + (f"\ns_setprio {prio}" if cback and role == "C" else ""))
            if po:
                isa = next(i for i, x in enumerate(out) if "; SA" in x); if0 = max(i for i, x in enumerate(out) if "; F0" in x or "; P1" in x)
                out.insert(max(if0 + 1, isa - pollback), po[0].split(";")[0])
            if po and cyield is not None and role == "C": out.insert(len(out) - cyield, "s_setprio 0")
            if po and lup is not None and role == "L": out.insert(lup, "s_setprio 2")
            if po and early and role == "L": out.insert(xpos2, "s_barrier")
            for k, x in enumerate(out):
                if stamp and sset == "b1" and k % 16 == 0: st("b1")
                if cw and po and any(f"v{vMV+t}," in x for t in range(4)) and not any("ds_read" in y for y in out[k:]): a.lgkm0()
                a.e(x)
                if hook and hook[0] in x: a.e(hook[1])
            L.clear()
        rd = lambda dst, base, sec, t: e(f"ds_read_b64 {vr(dst,2)}, v{base} offset:{sec*2048 + t*512}")
        def maskq(t):
            for d in range(2): e(f"v_and_b32 v{QO+4*t+d}, v{vM+2*t+d}, v{Q+2*t+d}\nv_xor_b32 v{QO+4*t+2+d}, v{QO+4*t+d}, v{Q+2*t+d}")
        ORD = {b: ((0, 2, 3, 1) if widev and b in (3, 4) else (0, 1, 3, 2)) for b in range(5)}
        def maskv(t):
            if widev:
                te, to_ = (1, 2) if t in (1, 2) else (0, 3)
                src = (VR[te], VR[te] + 1, VR[to_] + 1) if t == te else (VR[te] + 2, VR[te] + 3, VR[to_] + 3)
            else: src = (VR[t], VR[t] + 1, VR[t] + 3)
            for k in range(3): e(f"v_and_b32 v{VL[t]+ORD[t][k]}, v{vMV+t}, v{src[k]}\nv_xor_b32 v{VR[t]+ORD[t+1][k]}, v{VL[t]+ORD[t][k]}, v{src[k]}")
            e(f"v_mov_b32 v{VL[t]+ORD[t][3]}, 0")
        def smfma(b):
            for (kk, c, o) in ((KP, vCp, 0), (K, vCs, 4)):
                d = vr(S + 8 * b + o, 4)
                if b == 0: e(f"v_mfma_f32_16x16x16_bf16 {d}, {vr(kk,2)}, {vr(QO,2)}, {vr(c,4)}")
                elif b == 4: e(f"v_mfma_f32_16x16x16_bf16 {d}, {vr(kk+6,2)}, {vr(QO+14,2)}, {vr(c,4)}")
                else: e(f"v_mfma_f32_16x16x32_bf16 {d}, {vr(kk+2*b-2,4)}, {vr(QO+4*b-2,4)}, {vr(c,4)}")
            s0 = S + 8 * b
            for d in range(2): e(f"v_max3_f32 v{AB+2*b+d}, v{s0+2*d+1}, v{s0+4+2*d}, v{s0+5+2*d}")
        def mid2(mid, y, x):
            if rc1 and role == "L" and "rcp" in mid(x, x): e(mid(x, x)); e(f"v_mov_b32 v{y}, v{x}")
            else: e(mid(y, x)); e(mid(x, x))
        def red(op, src, mid):
            if len(src) == 2:
                x, y = src
                e(f"v_permlane16_swap_b32 v{x}, v{y}\n{op} v{x}, v{x}, v{y}\nv_mov_b32 v{y}, v{x}\nv_permlane32_swap_b32 v{x}, v{y}\n{op} v{x}, v{x}, v{y}")
                mid2(mid, y, x); e(f"v_permlane16_swap_b32 v{x}, v{y}")
            else:
                x, y, z, u = src
                e(f"v_permlane16_swap_b32 v{x}, v{y}\nv_permlane16_swap_b32 v{z}, v{u}\n{op} v{x}, v{x}, v{y}\n{op} v{z}, v{z}, v{u}")
                e(f"v_permlane32_swap_b32 v{x}, v{z}\n{op} v{x}, v{x}, v{z}")
                mid2(mid, z, x); e(f"v_permlane32_swap_b32 v{x}, v{z}\nv_mov_b32 v{y}, v{x}\nv_permlane16_swap_b32 v{x}, v{y}")
        def softmax(heads):
            n = len(heads); T = list(range(R_, R_ + (4 if n == 2 else 8), 2))
            hh = heads + heads[-1:] * (len(T) - n)
            pk = lambda k: (vr(T[k] & ~1, 2), T[k] & 1)
            for k, b in enumerate(hh): e(f"v_max_f32 v{T[k]}, v{AB+2*b}, v{AB+2*b+1}")
            red("v_max_f32", T, lambda d, x: f"v_mul_f32 v{d}, s{sCE}, v{x}")
            for k, b in enumerate(heads):
                r_, o = pk(k)
                e(f"v_pk_fma_f32 {vr(AB+2*b,2)}, {vr(AB+2*b,2)}, {sp(sCE)}, {r_} op_sel:[0,0,{o}] op_sel_hi:[1,1,{o}] neg_lo:[0,0,1] neg_hi:[0,0,1]")
                for d in range(2): e(f"v_exp_f32 v{AB+2*b+d}, v{AB+2*b+d}")
            for k, b in enumerate(hh): e(f"v_add_f32 v{T[k]}, v{AB+2*b}, v{AB+2*b+1}")
            red("v_add_f32", T, lambda d, x: f"v_rcp_f32 v{d}, v{x}")
            for k, b in enumerate(heads):
                r_, o = pk(k)
                e(f"v_pk_mul_f32 {vr(AB+2*b,2)}, {vr(AB+2*b,2)}, {r_} op_sel:[0,{o}] op_sel_hi:[1,{o}]")
                e(f"v_cvt_pk_bf16_f32 v{AB+2*b}, v{AB+2*b}, v{AB+2*b+1}")
                for k2, d in enumerate(ORD[b][:3]): e(f"v_and_b32 v{Pb[b]+d}, v{vMe+k2}, v{AB+2*b}")
                e(f"v_mov_b32 v{Pb[b]+ORD[b][3]}, 0")
        def pv(t, side, first):
            e(f"v_mfma_f32_16x16x32_bf16 {vr(Ot[t],4)}, {vr((VL,VR)[side][t],4)}, {vr(Pb[t+side],4)}, {0 if first else vr(Ot[t],4)}")
            if not first:
                for d in range(2): e(f"v_cvt_pk_bf16_f32 v{Od[t]+d}, v{Ot[t]+2*d}, v{Ot[t]+2*d+1}")
        flag = lambda k: f"buffer_store_dword v{vOne}, v{vFs}, {srd(sEx)}, 0 offen offset:{(256 if fl2 else 36)*k} {sm}"
        poll = f"buffer_load_dword v{PL}, v{vFp}, {srd(sEx)}, 0 offen sc1"
        def check(tag, mask, extra=""):
            a.e(f"v_cmp_ne_u32 vcc, 0, v{PL}")
            a(f"s_andn2_b32 {T0}, {mask}, vcc_lo\ns_cbranch_scc1 L_{tag}r{sfx}\nL_{tag}d{sfx}:")
            late.append(f"L_{tag}r{sfx}:\n{SPIN}L_{tag}d{sfx}\n{poll}\ns_waitcnt vmcnt(0)\n{extra}\nv_cmp_ne_u32 vcc, 0, v{PL}\ns_nop 0\ns_andn2_b32 {T0}, {mask}, vcc_lo\ns_cbranch_scc1 L_{tag}r{sfx}\ns_branch L_{tag}d{sfx}")
        def bread(n, em=None):
            n = [0, 9, 1, 2, 3, 4, 5, 6, 7, 8, 10, 11, 12, 13, 14, 15, 16, 17][n]
            q, hb = n % 9, n // 9
            for t in range(2):
                for h in range(2):
                    off = q * 8192 + ((2048, 4096), (0, 6144))[hb][h]
                    base = vWO + t
                    if off >= 32768: off -= 32768; base += 2
                    (em or a.e)(f"ds_read_b64_tr_b16 {vr(BB+8*n+4*t+2*h,2)}, v{base} offset:{off}")

        if role == "L": a(wowait)
        a("s_barrier")
        st("e2e")
        a.reset()
        a.vq.append({"T_wo"})
        if wide:
            for p in range(2):
                for dst, base, sec in ((Q, vT + 3, 0), (K, vT + 3, 1), (KP, vT + 4, 1)): e(f"ds_read_b128 {vr(dst+4*p,4)}, v{base} offset:{sec*2048 + p*1024}")
        else:
            for t in (0, 3, 1, 2): rd(Q + 2 * t, vXs, 0, t); rd(K + 2 * t, vXs, 1, t); rd(KP + 2 * t, vXp, 1, t)
        for t in range(4): maskq(t)
        sk = lskip and sfx == "Lf"
        for b in ((1, 2, 3) if sk else (0, 4, 1, 2, 3)): smfma(b)
        sP = sX if aout == 2 and role == "C" else sD
        e(f"buffer_store_dwordx2 {vr(AB,2)}, v{vP1a}, {srd(sP)}, 0 offen {sm} ; P1")
        e(f"buffer_store_dwordx2 {vr(AB+8,2)}, v{vP1b}, {srd(sP)}, 0 offen {sm} ; P1 w=p1")
        fast = sfx[1] == "f"
        p1l = f"buffer_load_dwordx2 {vr(RM,2)}, v{vP1l}, {srd(sP)}, 0 offen sc1\nbuffer_load_dwordx2 {vr(RM+2,2)}, v{vP1r}, {srd(sP)}, 0 offen sc1"
        if not fast: e(flag(0) + " ; F0 r=p1")
        if widev:
            for p, (te, to_) in enumerate(((1, 2), (0, 3))):
                e(f"ds_read_b128 {vr(VR[te],4)}, v{vT+3} offset:{4096 + p*1024}\nds_read_b128 {vr(VR[to_],4)}, v{vT+4} offset:{4096 + p*1024}")
        else:
            for t in range(4): rd(VR[t], vXs, 2, t); rd(VR[t] + 2, vXp, 2, t)
        df = fast and (dfC if role == "C" else dfL)
        for t in (2, 1, 3, 0)[:2 if df >= 2 else 4]: maskv(t)
        softmax([1, 2, 3])
        pv(1, 0, 1); pv(1, 1, 0); pv(2, 0, 1); pv(2, 1, 0)
        L.append((p1l if fast else poll) + " ; PO")
        if aout: e(f"buffer_store_dwordx4 {vr(Od[1],4)}, v{vOA}, {srd(sX)}, 0 offen {'' if fast else sm} ; SA w=sa")
        else: e(f"buffer_store_dwordx4 {vr(Od[1],4)}, v{vO}, {srd(sD)}, s{S_Q} offen {sm} ; SA w=sa")
        if fast and noack: e(flag(1) + " ; SF")
        if not df: pv(0, 1, 1); pv(3, 0, 1)
        flush({"; P1": (p1C if role == "C" else p1L) if fast else 200, "; F0": 150, "; SA": saB, "; SF": 29}, pollback=pbC if role == "C" else pbL)
        stl()
        if df:
            if df >= 2: maskv(3); maskv(0)
            pv(0, 1, 1); pv(3, 0, 1)
            if role == "C" and (df < 3 or pre1): flush()
        word = f"ds_read_b32 v{PL+1}, v{vFl} offset:4"
        if wo_pre == nlate: word = ""
        def wochk():
            if wo_pre == nlate: return
            a.e(f"v_cmp_gt_u32 vcc, 2, v{PL+1}")
            a(f"s_cbranch_vccnz L_wor{sfx}\nL_wod{sfx}:")
            late.append(f"L_wor{sfx}:\n{SPIN}L_wod{sfx}\n{word}\ns_waitcnt lgkmcnt(0)\nv_cmp_gt_u32 vcc, 2, v{PL+1}\ns_cbranch_vccnz L_wor{sfx}\ns_branch L_wod{sfx}")
        if role == "C" and pre1: a.e(word)
        if owa: a.e(f"ds_write_b128 v{vOw}, {vr(Od[1],4)}")
        ff = fast and fafirst and role == "C"
        if ff: a.e(flag(1) + " ; r=sa" + (f"\ns_setprio {prio}" if cback else ""))
        if sk:
            for t in (0, 3):
                for d in range(2): a.e(f"v_cvt_pk_bf16_f32 v{Od[t]+d}, v{Ot[t]+2*d}, v{Ot[t]+2*d+1}")
            a.e(f"buffer_store_dwordx4 {vr(Od[0],4)}, v{vO}, {srd(sD)}, s{S_Q} offen offset:1024 {smB} ; w=sb")
            a.e(f"ds_write_b128 v{vOw}, {vr(Od[1],4)}\nds_write_b128 v{vOw}, {vr(Od[0],4)} offset:3072")
            a.e(flag(1) + " ; r=sa"); a.e(flag(2) + " ; r=sb"); a.lgkm0(); a("s_barrier")
            return late
        if fast:
            chk = f"v_max3_u32 v{PL}, v{RM}, v{RM+1}, v{RM+2}\nv_max_u32 v{PL}, v{PL}, v{RM+3}\nv_cmp_eq_u32 vcc, -1, v{PL}"
            a.e(chk)
            a(f"s_cbranch_vccnz L_c1r{sfx}\nL_c1d{sfx}:")
            rw = "s_waitcnt vmcnt(0)" if noack or ff else f"s_waitcnt vmcnt(2)\n{flag(1)}\ns_waitcnt vmcnt(1)"
            late.append(f"L_c1r{sfx}:\n{SPIN}L_c1d{sfx}\n{p1l}\n{rw}\n{chk}\ns_cbranch_vccnz L_c1r{sfx}\ns_branch L_c1d{sfx}")
            if not (noack or ff): e(flag(1) + " ; FA r=sa")
        else:
            check("c1", S_M1, flag(1))
            a.e(p1l)
            a.e(flag(1) + " ; r=sa")
        stl()
        if role == "C" and pre1:
            wochk()
            for n in range(pre1): bread(n, e)
        a.e(f"v_pk_add_f32 {vr(AB,2)}, {vr(AB,2)}, {vr(RM,2)}")
        stl()
        e(f"v_pk_add_f32 {vr(AB+8,2)}, {vr(AB+8,2)}, {vr(RM+2,2)}")
        softmax([0, 4])
        pv(0, 0, 0); pv(3, 1, 0)
        if sP == sX: e(f"buffer_store_dwordx4 {vr(Od[0],4)}, v{vXp}, {srd(sX)}, 0 offen {sm} ; w=sb")
        else: e(f"buffer_store_dwordx4 {vr(Od[0],4)}, v{vO}, {srd(sD)}, s{S_Q} offen offset:1024 {smB} ; w=sb")
        if role == "C" and not pre1: e(word)
        flush({"w=sb": 10}, fapos=faC if role == "C" else faL)
        stl()
        nb2 = fast and noack == 2
        if nb2: a.e(flag(2))
        ownw = (f"ds_write_b128 v{vOw}, {vr(Od[1],4)}\n" if not owa else "") + f"ds_write_b128 v{vOw}, {vr(Od[0],4)} offset:3072"
        if role == "L": a.e(ownw); a.lgkm0()
        if role == "L":
            if lk1: a("s_barrier")
            if not nb2: a.e(flag(2) + " ; r=sb")
            st("post")
            return late
        if not pre1: wochk()
        a.e(ownw)
        for n in range(pre1, pre1 + preb): bread(n)
        if not nb2: a.e(flag(2) + " ; r=sb")
        stl()
        for n in range(pre1 + preb, pre2): bread(n)
        nb = max(pre1 + preb, pre2)
        a.e(f"v_mov_b32 v{vFl}, {H0}")
        if cyield is not None: a(f"s_setprio {prio}")
        seen = set()
        def mm(f):
            kind, q, ti = frags[f]; n = kind * 9 + q; R = []
            assert [0, 9, 1, 2, 3, 4, 5, 6, 7, 8, 10, 11, 12, 13, 14, 15, 16, 17].index(n) < nb
            for t in range(2):
                d = vr(OA + 8 * ti + 4 * t, 4)
                R.append(f"v_mfma_f32_16x16x32_bf16 {d}, {vr(BB+8*n+4*t,4)}, {vr(AF+4*(f%NA),4)}, {d if ti in seen else 0}")
            seen.add(ti)
            return R
        def outp(ti):
            R = []
            if dso:
                o = OA + 8 * ti
                return [f"v_cvt_pk_bf16_f32 v{o+k}, v{o+2*k}, v{o+2*k+1}" for k in range(4)] + ["", f"v_permlane16_swap_b32 v{o}, v{o+2}", f"v_permlane16_swap_b32 v{o+1}, v{o+3}"]
            for t in range(2):
                o = OA + 8 * ti + 4 * t
                R.append(f"v_cvt_pk_bf16_f32 v{o}, v{o}, v{o+1}\nv_cvt_pk_bf16_f32 v{o+1}, v{o+2}, v{o+3}")
            for t in range(2): R.append(f"ds_write_b64 v{vT+2 if t else vTw}, {vr(OA+8*ti+4*t,2)} offset:{ti*1024*(reuse != 2)}")
            R.append(f"ds_read_b128 {vr(BB+4*ti,4)}, v{vTr} offset:{ti*1024*(reuse != 2)}")
            return R
        ostore = lambda ti: f"buffer_store_dwordx4 {vr(OA+8*ti if dso else BB+4*ti,4)}, v{vSt+ti}, {srd(sOut)}, 0 offen {out_mod}"
        MK = 108
        mrd = lambda k: f"ds_read_b32 v{MK}, v{vFl} offset:{64+4*k}"
        ard = lambda f: f"ds_read_b128 {vr(AF+4*(f%NA),4)}, v{(vR0,vR1,vT+1)[floc(f)[0]]} offset:{floc(f)[1]*1024}"
        a.lgkm0(); a("s_barrier"); stl(); st("p2")
        avail = cks[0]; ck = 1; nr = 0; stage = 0; tst = 0
        Bq = []
        for n in range(nb, 18): bread(n, Bq.append)
        nb0 = nb; nB = len(Bq)
        while nr < min(avail, LA): a.e(ard(nr)); nr += 1
        extra = []
        def step(g, force=False):
            nonlocal stage, tst, avail, ck
            if ck >= len(cks): return False
            if stage == 0 and (force or avail - g / 2 <= LAG + (d1 + d2) / 2):
                a.e(mrd(ck)); stage = 1; tst = g; return True
            if stage == 1 and (force or g >= tst + d1):
                a.e(f"v_cmp_eq_u32 vcc, 0, v{MK}"); stage = 2; tst = g; return True
            if stage == 2 and (force or g >= tst + d2):
                a(f"s_cbranch_vccnz L_m{ck}r{sfx}\nL_m{ck}d{sfx}:")
                late.append(f"L_m{ck}r{sfx}:\n{mrd(ck)}\n{SPIN}L_m{ck}d{sfx}\ns_waitcnt lgkmcnt(0)\nv_cmp_eq_u32 vcc, 0, v{MK}\ns_cbranch_vccnz L_m{ck}r{sfx}\ns_branch L_m{ck}d{sfx}")
                if ck in (1, len(cks) // 2, len(cks) - 1): stl()
                if ck > 1: st("p2")
                avail = cks[ck]; ck += 1; stage = 0; return True
            return False
        for f in range(54):
            while nr <= f:
                while nr >= avail: step(2 * f, True)
                a.e(ard(nr)); nr += 1
            nb = nb0 + (nB - len(Bq)) // 4
            if f == warf and (pre2 < 18 or reuse) and not nowar:
                assert avail <= warl <= 43 and (stage == 0 or cks[ck] <= warl or True) and (f >= (11 if dso else 18) if reuse else not Bq and not any(int(r[1:]) >= BB for q_ in a.lq for r in q_))
                a("s_barrier")
            if f == opos: extra = [y for x in (outp(0) + [ostore(0)] + outp(1) + [ostore(1)] if dso else outp(0) + outp(1) + ["", "", ostore(0), "", ostore(1)]) for y in x.split("\n")]
            cpl = f"buffer_load_dword v{MK+1}, v{vCp_}, {srd(sEx)}, 0 offen sc1"
            if aout and f == cpoll and fast: a.e(cpl)
            if aout and f == 52 and cpoll is None:
                assert ck == len(cks)
                a.e(mrd(len(cks)))
            for h, m in enumerate(mm(f)):
                n0 = len(a.l)
                a.e(m)
                g = 2 * f + h
                slots = 2 if h == 0 else 1
                while slots > 0:
                    if step(g): pass
                    elif nr < min(avail, f + LA, 54): a.e(ard(nr)); nr += 1
                    elif Bq: a.e(Bq.pop(0))
                    elif extra and not (aout and "store" in extra[0]):
                        x = extra.pop(0); a.e(x)
                        if "write" in x or "swap" in x: slots -= 1
                    else: break
                    slots -= 1
        assert ck == len(cks) and not Bq
        o2 = outp(2)
        if aout:
            kd = len(cks)
            sts = [y for y in extra if "store" in y]; assert len(sts) == 2
            for x in [y for y in extra if "store" not in y]: a.e(x)
            if cpoll is None:
                a.e(f"v_cmp_eq_u32 vcc, 0, v{MK}")
                for x in o2[:2]: a.e(x)
                a(f"s_cbranch_vccnz L_mdr{sfx}\nL_mdd{sfx}:")
                late.append(f"L_mdr{sfx}:\n{mrd(kd)}\n{SPIN}L_mdd{sfx}\ns_waitcnt lgkmcnt(0)\nv_cmp_eq_u32 vcc, 0, v{MK}\ns_cbranch_vccnz L_mdr{sfx}\ns_branch L_mdd{sfx}")
            else:
                if fast: a.e(f"v_cmp_ne_u32 vcc, 0, v{MK+1}")
                for x in o2[:2]: a.e(x)
                if fast:
                    a(f"s_andn2_b32 {T0}, 0x3ffff, vcc_lo\ns_cbranch_scc1 L_mdr{sfx}\nL_mdd{sfx}:")
                    late.append(f"L_mdr{sfx}:\n{cpl}\n{SPIN}L_mdd{sfx}\ns_waitcnt vmcnt(0)\nv_cmp_ne_u32 vcc, 0, v{MK+1}\ns_nop 0\ns_andn2_b32 {T0}, 0x3ffff, vcc_lo\ns_cbranch_scc1 L_mdr{sfx}\ns_branch L_mdd{sfx}")
            extra = sts; o2 = o2[2:]
        if dso:
            for x in extra: a.e(x)
            extra = []
        for x in [y for y in extra if "store" not in y] + [y for y in extra if "store" in y][:-1] + o2 + [y for y in extra if "store" in y][-1:]: a.e(x)
        a.e(ostore(2))
        if stamp:
            st("post"); st("p2"); a("s_waitcnt vmcnt(0)"); st("post"); st("e2e")
        return late
    late = post("C", "Cf", st_mod)
    a("L_fin:")
    if stamp:
        a(f"s_waitcnt lgkmcnt(0)\ns_lshl_b32 {T0}, s2, 3\ns_add_u32 {T0}, {T0}, {S_W}\ns_lshl_b32 {T0}, {T0}, 7\ns_add_u32 {T0}, {T0}, {STAMP_OFF}")
        a(f"s_add_u32 s{sK2}, s{sK2+2}, {T0}\ns_addc_u32 s{sK2+1}, s{sK2+3}, 0\nv_mov_b32 v1, 0")
        for k in range(NST): a(f"v_mov_b32 v2, s{S_ST+2*k}\nglobal_store_dword v1, v2, {sp(sK2)} offset:{4*k}")
    a("L_end:\ns_endpgm")
    lateCf = late
    a((".p2align 6" if cpad is None or not lal else ".p2align 12") + "\nL_attnL:")
    lateL = decide("attnL")
    for role, sfx, sm in (("L", "Lf", st_mod), ("L", "Ls", "sc1"), ("C", "Cs", "sc1")):
        if sfx != "Lf": a(f"L_attn{sfx}:")
        late = post(role, sfx, sm)
        a("s_branch L_fin" if stamp and (role == "C" or sset == "b1" or stampL) else "s_endpgm")
        for x in (late + lateCf if sfx == "Lf" else late): a(x)
    a(lateC); a(lateL); a(".fill 512, 4, 0xbf800000\nL_last:")
    if fex:
        L2 = []
        for x in a.l:
            if f"buffer_store_dword v{vOne}, v{vFs}," in x:
                if L2[-1].strip().startswith("s_waitcnt"): L2.insert(len(L2) - 1, "    s_mov_b64 exec, 1")
                else: L2.append("    s_mov_b64 exec, 1")
                L2 += [x, "    s_mov_b64 exec, -1"]
            else: L2.append(x)
        a.l = L2
    lines, tot = hz.fix(a.l)
    lines = [x.split(";")[0].rstrip() for x in lines]
    body = "\n".join(lines) + "\n"
    return kernel_file(body, 256, 512, 163840, vgpr=256, sgpr=102)

def labels(asm):
    import subprocess, os, re
    p = f"_lab{os.getpid()}"
    open(p + ".s", "w").write(asm)
    subprocess.run(["clang", "-x", "assembler", "-target", "amdgcn-amd-amdhsa", "-mcpu=gfx950", "-c", p + ".s", "-o", p + ".o"], check=True)
    out = subprocess.run(["llvm-readelf", "-s", p + ".o"], capture_output=True, text=True).stdout
    return {m.group(2): int(m.group(1), 16) for m in re.finditer(r"\d+: ([0-9a-f]{16}) .* (L_\w+)$", out, re.M)}
def gen(page=1, pshift=0, **kw):
    if not page: return gen0(**kw)
    L = labels(gen0(**kw))
    if "L_tramp" in L: kw["tpad"] = max(0, (512 - L["L_tramp"]) // 4)
    cpad = (pshift - (L["L_postC"] - L["L_comp"])) % 4096
    L = labels(gen0(cpad=cpad, **kw))
    npf = -(-L["L_attnLs"] // 2048)
    assert npf * 2048 + 4096 <= L["L_last"]
    return gen0(cpad=cpad, npf=npf, **kw)

STAMPSETS = [("comp", slice(0, 4), 14), ("ld45", slice(4, 6), 14), ("ld67", slice(6, 8), 14)]
def workers(w): return w[:, :216], w[:, 216:]
if __name__ == "__main__":
    open("k21.s", "w").write(gen())
    open("k21s.s", "w").write(gen(stamp=True))
```
